```python
import torch

def _softmax(x, axis=-1):
    return torch.softmax(x, dim=axis)
def _gelu(x):
    return torch.nn.functional.gelu(x, approximate="tanh")
def _silu(x):
    return torch.nn.functional.silu(x)
def _sigmoid(x):
    return torch.sigmoid(x)
def _layernorm(x, axis=-1, eps=1e-5):
    m = x.mean(dim=axis, keepdim=True)
    v = x.var(dim=axis, keepdim=True, unbiased=False)
    return (x - m) / torch.sqrt(v + eps)
def _scatter_add(tgt, idx, src, axis=0):
    return tgt.clone().index_add_(axis, idx, src)
def _segment_sum(src, seg, n):
    out = torch.zeros((n,) + src.shape[1:], dtype=src.dtype)
    return out.index_add_(0, seg, src)
def _pad(x, pw):
    flat = tuple(v for pair in reversed(pw) for v in pair)
    return torch.nn.functional.pad(x, flat)

kernel_name = 'sequential_preLN__ssm_conv_h3__glu_gated_swiglu__prompt'

def setup_inputs():

    _w = (lambda a: (lambda t: t.to(torch.bfloat16) if t.is_floating_point() else t)(torch.as_tensor(a)))
    def _A_setup():
        B, S, D = 1, 2048, 448
        ks = 4
        return {
            "q": _w((lambda *s: torch.randn(*s, dtype=torch.bfloat16) * 0.05)(B, S, D)),
            "k": _w((lambda *s: torch.randn(*s, dtype=torch.bfloat16) * 0.2)(B, S, D)),
            "v": _w((lambda *s: torch.randn(*s, dtype=torch.bfloat16) * 0.2)(B, S, D)),
            "shift_k": _w((lambda *s: torch.randn(*s, dtype=torch.bfloat16) * 0.2)(D, ks) * 0.5),
            "ssm_k": _w((lambda *s: torch.randn(*s, dtype=torch.bfloat16) * 0.4)(D, S) * (1.0 / S ** 0.5)),
            "ssm_D": _w((lambda *s: torch.randn(*s, dtype=torch.bfloat16) * 0.2)(D)),
        }
    _A_in = _A_setup()

    def _B_setup():
        B, S, D, F = 1, 2048, 448, 1792
        return {
            "x": _w((lambda *s: torch.randn(*s, dtype=torch.bfloat16) * 0.05)(B, S, D)),
            "w1": _w((lambda *s: torch.randn(*s, dtype=torch.bfloat16) * 0.2)(D, F) * (2.0 / D) ** 0.5),
            "w3": _w((lambda *s: torch.randn(*s, dtype=torch.bfloat16) * 0.2)(D, F) * (2.0 / D) ** 0.5),
            "w2": _w((lambda *s: torch.randn(*s, dtype=torch.bfloat16) * 0.2)(F, D) * (2.0 / F) ** 0.5),
        }
    _B_in = _B_setup()

    return {
        "A_q": _A_in["q"],
        "A_k": _A_in["k"],
        "A_v": _A_in["v"],
        "A_shift_k": _A_in["shift_k"],
        "A_ssm_k": _A_in["ssm_k"],
        "A_ssm_D": _A_in["ssm_D"],
        "B_x": _B_in["x"],
        "B_w1": _B_in["w1"],
        "B_w3": _B_in["w3"],
        "B_w2": _B_in["w2"],
    }

def reference(A_q, A_k, A_v, A_shift_k, A_ssm_k, A_ssm_D, B_x, B_w1, B_w3, B_w2):
    def _A_ref(q, k, v, shift_k, ssm_k, ssm_D):
        B, S, D = q.shape
        ks = shift_k.shape[-1]
        k_pad = _pad(k, ((0, 0), (ks - 1, 0), (0, 0)))
        k_shift = torch.zeros_like(k)
        for t in range(ks):
            k_shift = k_shift + k_pad[:, t:t + S, :] * shift_k[:, ks - 1 - t][None, None, :]
        kv = k_shift * v
        L = 2 * S
        kv_pad = _pad(kv, ((0, 0), (0, S), (0, 0)))
        kf_pad = _pad(ssm_k, ((0, 0), (0, S)))
        kv_f = (lambda x, axes=(-2,-1): torch.fft.rfft2(x.float(), dim=axes))(kv_pad[:, None, :, :], axes=(1, 2))
        kf_f = (lambda x, axes=(-2,-1): torch.fft.rfft2(x.float(), dim=axes))(kf_pad[:, None, :], axes=(1, 2))
        kf_f = (lambda x, *d: x.permute(*d))(kf_f, 1, 2, 0)
        y_f = kv_f * kf_f[None, :, :, :]
        y = (lambda x, s, axes=(-2,-1): torch.fft.irfft2(x, s=s, dim=axes).to(torch.bfloat16))(y_f, (1, L), axes=(1, 2))[:, 0, :S, :]
        y = y + kv * ssm_D[None, None, :]
        return q * y

    def _B_ref(x, w1, w3, w2):
        gate = torch.einsum("bsd,df->bsf", x, w1)
        up = torch.einsum("bsd,df->bsf", x, w3)
        h = _silu(gate) * up
        out = torch.einsum("bsf,fd->bsd", h, w2)
        return out

    x = A_q
    h = x + _A_ref(_layernorm(x, axis=-1), A_k, A_v, A_shift_k, A_ssm_k, A_ssm_D)
    h2 = h + _B_ref(_layernorm(h, axis=-1), B_w1, B_w3, B_w2)
    return h2
```

```python
import re

REG_RE = re.compile(r"\b([vas])(\d+)\b|\b([vas])\[(\d+):(\d+)\]|\b(vcc|exec|m0|vcc_lo|vcc_hi|exec_lo|exec_hi)\b")
TRANS = ("v_exp_f32", "v_log_f32", "v_rcp_f32", "v_rsq_f32", "v_sqrt_f32", "v_sin_f32", "v_cos_f32")
NO_DST_S = ("s_cmp", "s_waitcnt", "s_barrier", "s_branch", "s_cbranch", "s_nop", "s_endpgm", "s_setprio",
            "s_sleep", "s_bitcmp", "s_setreg", "s_sendmsg")


def regs_of(tok):
    out = set()
    for m in REG_RE.finditer(tok):
        if m.group(1):
            out.add((m.group(1), int(m.group(2))))
        elif m.group(3):
            for i in range(int(m.group(4)), int(m.group(5)) + 1):
                out.add((m.group(3), i))
        else:
            n = m.group(6)
            if n.startswith("vcc"):
                out.add(("s", "vcc"))
            elif n.startswith("exec"):
                out.add(("s", "exec"))
            else:
                out.add(("s", "m0"))
    return out


def split_ops(s):
    ops, depth, cur = [], 0, ""
    for ch in s:
        if ch == "[":
            depth += 1
        if ch == "]":
            depth -= 1
        if ch == "," and depth == 0:
            ops.append(cur.strip())
            cur = ""
        else:
            cur += ch
    if cur.strip():
        ops.append(cur.strip())
    return ops


class Ins:
    def __init__(self, text):
        self.text = text
        t = text.split(";")[0].strip()
        self.label = t.endswith(":")
        self.directive = t.startswith(".")
        parts = t.split(None, 1)
        self.op = parts[0] if parts else ""
        rest = parts[1] if len(parts) > 1 else ""
        ops = split_ops(rest)
        self.mods = ""
        if ops:
            last = ops[-1]
            m = re.match(r"^(\S+(?:\[[^\]]*\])?)\s*(.*)$", last)
            toks = last.split(None, 1)
            ops[-1] = toks[0]
            self.mods = toks[1] if len(toks) > 1 else ""
        self.ops = ops
        op = self.op
        self.mfma = op.startswith("v_mfma")
        self.valu = op.startswith("v_") and not self.mfma
        self.vmem = op.startswith(("buffer_", "global_", "flat_"))
        self.ds = op.startswith("ds_")
        self.salu = op.startswith("s_")
        self.trans = op.startswith(TRANS)
        self.dot = op.startswith("v_dot")
        self.dpp = self.valu and (op.endswith("_dpp") or re.search(r"quad_perm|row_|wave_", self.mods) is not None)
        self.permlane = op.startswith("v_permlane")
        self.readlane = op.startswith(("v_readfirstlane", "v_readlane"))
        self.ldsdma = self.vmem and (re.search(r"\blds\b", self.mods) is not None or "_lds_" in op)
        self.states = 1
        if op == "s_nop":
            self.states = int(ops[0], 0) + 1
        dst, src = set(), set()
        self.srcA = self.srcB = self.srcC = set()
        self.widedata = set()
        R = [regs_of(o) for o in ops]
        if self.mfma:
            dst = R[0]
            self.srcA, self.srcB, self.srcC = R[1], R[2], R[3]
            src = R[1] | R[2] | R[3]
            self.passes = 8 if "32x32x16" in op else 4
            assert "32x32x16_bf16" in op or "16x16x32_bf16" in op, op
        elif self.valu:
            if self.permlane or op.startswith("v_swap"):
                dst = R[0] | R[1]
                src = R[0] | R[1]
            elif op.startswith("v_cmpx"):
                dst = {("s", "exec")} | R[0]
                for r in R[1:]:
                    src |= r
            elif op.startswith("v_nop"):
                pass
            else:
                dst = R[0]
                start = 1
                if re.match(r"v_(add|sub|subrev|addc|subb)_co", op) or op.startswith("v_div_scale"):
                    dst = dst | R[1]
                    start = 2
                for r in R[start:]:
                    src |= r
                if op.startswith(("v_fmac", "v_dot2c", "v_mac", "v_pk_fmac")) or self.dpp or op.startswith("v_writelane"):
                    src |= R[0]
        elif self.vmem:
            if "store" in op or self.ldsdma or "atomic" in op or op.startswith(("buffer_wbl2", "buffer_inv")):
                for r in R:
                    src |= r
                if "store" in op and ("x3" in op or "x4" in op):
                    self.widedata = R[0] if op.startswith("buffer") else R[1]
                if "atomic" in op and "sc0" in self.mods:
                    dst = R[0]
                if self.ldsdma:
                    src.add(("s", "m0"))
            else:
                dst = R[0]
                for r in R[1:]:
                    src |= r
                if "d16" in op:
                    src |= R[0]
        elif self.ds:
            if op.startswith(("ds_write", "ds_add", "ds_max", "ds_min")) and "rtn" not in op:
                for r in R:
                    src |= r
            else:
                dst = R[0]
                for r in R[1:]:
                    src |= r
        elif self.salu:
            if op.startswith(NO_DST_S):
                for r in R:
                    src |= r
            else:
                if R:
                    dst = R[0]
                for r in R[1:]:
                    src |= r
                if "saveexec" in op:
                    dst = dst | {("s", "exec")}
        self.dst, self.src = dst, src
        self.vdst = {r for r in dst if r[0] in "va"}
        self.sdst = {r for r in dst if r[0] == "s"}
        self.vsrc = {r for r in src if r[0] in "va"}
        self.ssrc = {r for r in src if r[0] == "s"}


BIG = {4: 8, 8: 12}
OVL = {4: 6, 8: 10}
WARC = {4: 3, 8: 7}


def need(p, c):
    n = 0
    if p.valu and c.mfma and (p.vdst & c.vsrc):
        n = max(n, 2)
    if p.mfma:
        P = p.passes
        if c.mfma:
            if p.dst & (c.srcA | c.srcB):
                n = max(n, BIG[P])
            if p.dst & c.srcC:
                if p.dst == c.srcC and p.passes == c.passes:
                    pass
                else:
                    n = max(n, OVL[P])
            elif p.dst & c.dst:
                n = max(n, OVL[P])
        elif c.valu:
            if p.dst & (c.vsrc | c.vdst):
                n = max(n, BIG[P])
            if p.srcC & c.vdst:
                n = max(n, WARC[P])
        elif c.vmem or c.ds:
            if p.dst & (c.vsrc | c.vdst):
                n = max(n, BIG[P])
            if p.srcC & c.vdst:
                n = max(n, WARC[P])
    if p.valu and p.sdst:
        if c.vmem and (p.sdst & c.ssrc):
            n = max(n, 5)
        if c.valu and (p.sdst & c.ssrc):
            n = max(n, 4 if c.op.startswith(("v_readlane", "v_writelane", "v_div_fmas")) else 2)
        if ("s", "exec") in p.sdst:
            if c.dpp:
                n = max(n, 5)
            if c.mfma or c.readlane or c.permlane:
                n = max(n, 4)
    if p.valu and p.vdst:
        if (c.dpp or c.permlane) and (p.vdst & c.vsrc):
            n = max(n, 2)
        if c.readlane and (p.vdst & c.vsrc):
            n = max(n, 1)
    if p.trans and c.valu and not c.trans and (p.vdst & c.vsrc):
        n = max(n, 1)
    if p.trans and (c.vmem or c.ds) and (p.vdst & c.vsrc):
        n = max(n, 1)
    if p.salu and ("s", "m0") in p.sdst and c.ldsdma:
        n = max(n, 1)
    if p.widedata and (p.widedata & c.vdst):
        n = max(n, 2)
    if p.dot and (p.vdst & (c.vsrc | c.vdst)):
        if c.op == p.op:
            ab = set()
            for o in c.ops[1:3]:
                ab |= regs_of(o)
            if p.vdst & ab:
                n = max(n, 3)
        else:
            n = max(n, 3)
    return n


class Stream:
    def __init__(self):
        self.ins = []
        self.vm = 0
        self.lg = 0

    def __call__(self, text):
        tok = None
        for line in text.split("\n"):
            line = line.strip()
            if not line or line.startswith(";"):
                continue
            i = Ins(line)
            self.ins.append(i)
            if i.vmem:
                self.vm += 1
                tok = ("vm", self.vm)
            if i.ds:
                self.lg += 1
                tok = ("lg", self.lg)
        return tok

    def wait(self, *toks, vm=None, lg=None):
        for t in toks:
            if t is None:
                continue
            if t[0] == "vm":
                n = self.vm - t[1]
                vm = n if vm is None else min(vm, n)
            else:
                n = self.lg - t[1]
                lg = n if lg is None else min(lg, n)
        parts = []
        if vm is not None:
            assert vm >= 0
            if vm <= 63:
                parts.append(f"vmcnt({vm})")
            else:
                parts.append("vmcnt(63)")
        if lg is not None:
            assert lg >= 0
            parts.append(f"lgkmcnt({min(lg, 15)})")
        if parts:
            self("s_waitcnt " + " ".join(parts))

    def comment(self, s):
        i = Ins("; " + s)
        i.op = ""
        i.states = 0
        i.text = "; " + s
        self.ins.append(i)

    def finish(self):
        out = []
        hist = []
        nn = 0
        for c in self.ins:
            if c.op == "" or c.directive:
                out.append(c.text)
                continue
            if c.label:
                out.append(c.text)
                continue
            req = 0
            dist = 0
            for p in reversed(hist):
                r = need(p, c)
                if r - dist > req:
                    req = r - dist
                dist += p.states
                if dist > 24:
                    break
            while req > 0:
                k = min(req, 8)
                nop = Ins(f"s_nop {k - 1}")
                out.append("    " + nop.text)
                hist.append(nop)
                nn += 1
                req -= k
            out.append("    " + c.text)
            hist.append(c)
            if len(hist) > 40:
                hist = hist[-40:]
        self.nops = nn
        return "\n".join(out)


def kernel_text(name, body, vgpr, agpr=0, sgpr=102):
    acc = (vgpr + 3) // 4 * 4
    total = acc + agpr
    txt = f".text\n.globl {name}\n.p2align 8\n.type {name},@function\n{name}:\n{body}\n"
    desc = f""".section .rodata,"a"
.p2align 6
.amdhsa_kernel {name}
  .amdhsa_next_free_vgpr {total}
  .amdhsa_next_free_sgpr {sgpr}
  .amdhsa_accum_offset {acc}
  .amdhsa_group_segment_fixed_size 0
  .amdhsa_kernarg_size 104
  .amdhsa_user_sgpr_count 2
  .amdhsa_user_sgpr_kernarg_segment_ptr 1
  .amdhsa_system_sgpr_workgroup_id_x 1
.end_amdhsa_kernel
"""
    return txt, desc


PROF = {"on": False}
PROF_OFF = 0x3000000


def prof_begin(k):
    if not PROF["on"]:
        return
    k("s_memrealtime s[84:85]")
    k("s_load_dwordx2 s[72:73], s[0:1], 96")
    k("s_waitcnt lgkmcnt(0)")
    for i in range(1, 8):
        k(f"s_mov_b32 s{84+2*i}, 0")


def prof_stamp(k, i):
    if not PROF["on"]:
        return
    k(f"s_memrealtime s[{84+2*i}:{85+2*i}]")
    k("s_waitcnt lgkmcnt(0)")


def prof_end(k, kidx, vtmp, drain=True):
    if not PROF["on"]:
        return
    if drain:
        k("s_waitcnt vmcnt(0)")
    k("s_memrealtime s[98:99]")
    k("s_mov_b64 exec, 1")
    k(f"s_add_u32 s76, s72, {PROF_OFF:#x}")
    k("s_addc_u32 s77, s73, 0")
    k("s_mov_b32 s78, 0x1000000")
    k("s_mov_b32 s79, 0x00020000")
    k(f"s_add_u32 s74, s2, {kidx*512}")
    k("s_lshl_b32 s74, s74, 9")
    k(f"v_lshrrev_b32 v{vtmp}, 6, v0")
    k(f"v_lshlrev_b32 v{vtmp}, 5, v{vtmp}")
    k("s_waitcnt lgkmcnt(0)")
    for i in range(8):
        k(f"v_mov_b32 v{vtmp+1}, s{84+2*i}")
        k(f"buffer_store_dword v{vtmp+1}, v{vtmp}, s[76:79], s74 offen offset:{4*i}")
```

```python
from asmgen import Stream, prof_begin, prof_stamp, prof_end
from layout import *
from k_prep import srd

CSTR = 4160
KC_BYTES = 8 * CSTR
KV_BASE = 2 * KC_BYTES
KV_BYTES = 5120
EX_BASE = KV_BASE + 2 * KV_BYTES
LDS = EX_BASE + 4 * 4096


def gen_colsum(k):
    k("s_lshr_b32 s15, s2, 3")
    k("s_cmp_ge_u32 s15, 28")
    k("s_cbranch_scc1 L_conv_end")
    k("s_load_dwordx4 s[4:7], s[0:1], 56")
    k("s_load_dwordx2 s[12:13], s[0:1], 96")
    k("v_and_b32 v1, 7, v0")
    k("v_lshrrev_b32 v2, 3, v0")
    k("v_mul_u32_u24 v3, 3584, v2")
    k("v_lshl_add_u32 v3, v1, 4, v3")
    k("s_lshl_b32 s16, s15, 7")
    k("v_add_u32 v3, s16, v3")
    k("s_mov_b32 s38, 0xffff0000")
    for e in range(16):
        k(f"v_mov_b32 v{8+e}, 0")
    k("s_waitcnt lgkmcnt(0)")
    srd(k, 20, 4, 5, W_BYTES)
    srd(k, 24, 6, 7, W_BYTES)
    srd(k, 32, 12, 13, WS_SMALL_END)
    toks = []
    for j in range(14):
        k(f"s_mov_b32 s17, {j*32*3584}")
        for m in range(2):
            r = 32 + (j * 2 + m) * 4
            toks.append(k(f"buffer_load_dwordx4 v[{r}:{r+3}], v3, s[{20+4*m}:{23+4*m}], s17 offen"))
    for j in range(14):
        for m in range(2):
            r = 32 + (j * 2 + m) * 4
            k.wait(toks[j * 2 + m])
            for w in range(4):
                k(f"v_lshlrev_b32 v{24+2*w}, 16, v{r+w}")
                k(f"v_and_b32 v{25+2*w}, s38, v{r+w}")
            for w in range(4):
                a = 8 + 8 * m + 2 * w
                k(f"v_pk_add_f32 v[{a}:{a+1}], v[{a}:{a+1}], v[{24+2*w}:{25+2*w}]")
    for e in range(8):
        k(f"v_permlane32_swap_b32 v{8+e}, v{16+e}")
    for e in range(8):
        k(f"v_add_f32 v{8+e}, v{8+e}, v{16+e}")
    for e in range(4):
        k(f"v_permlane16_swap_b32 v{8+e}, v{12+e}")
    for e in range(4):
        k(f"v_add_f32 v{8+e}, v{8+e}, v{12+e}")
    for e in range(4):
        k(f"v_add_f32_dpp v{8+e}, v{8+e}, v{8+e} row_ror:8 row_mask:0xf bank_mask:0xf")
    k("v_and_b32 v4, 63, v0")
    k("v_lshrrev_b32 v5, 5, v4")
    k("v_bfe_u32 v6, v4, 4, 1")
    k("v_lshlrev_b32 v7, 5, v1")
    k("v_lshl_add_u32 v7, v6, 4, v7")
    k("v_lshl_add_u32 v24, v5, 8, v7")
    k("v_lshrrev_b32 v25, 6, v0")
    k("v_lshl_add_u32 v25, v25, 9, v24")
    k("ds_write_b128 v25, v[8:11]")
    k("s_waitcnt lgkmcnt(0)")
    k("s_barrier")
    for w in range(4):
        k(f"ds_read_b128 v[{32+4*w}:{35+4*w}], v24 offset:{512*w}")
    k("v_mul_u32_u24 v5, 7168, v5")
    k("v_add_u32 v7, v5, v7")
    k("s_lshl_b32 s16, s15, 8")
    k(f"s_add_u32 s16, s16, {CS_OFF:#x}")
    k("s_waitcnt lgkmcnt(0)")
    for w in range(1, 4):
        for e in range(0, 4, 2):
            k(f"v_pk_add_f32 v[{32+e}:{33+e}], v[{32+e}:{33+e}], v[{32+4*w+e}:{33+4*w+e}]")
    k("v_cmp_gt_u32 vcc, 64, v0")
    k("s_and_saveexec_b64 s[48:49], vcc")
    k("s_cbranch_execz L_conv_end")
    k("buffer_store_dwordx4 v[32:35], v7, s[32:35], s16 offen")
    prof_end(k, 1, 4)
    k("s_endpgm")


def gen_conv():
    k = Stream()
    k("s_cmp_ge_u32 s2, 256")
    k("s_cbranch_scc1 L_conv_end")
    prof_begin(k)
    k("s_and_b32 s14, s2, 7")
    k("s_cmp_eq_u32 s14, 7")
    k("s_cbranch_scc1 L_conv_end")
    k.vm = 0
    k.lg = 0
    k("s_load_dwordx4 s[4:7], s[0:1], 32")
    k("s_load_dwordx2 s[12:13], s[0:1], 96")
    k("v_lshrrev_b32 v2, 6, v0")
    k("v_and_b32 v1, 63, v0")
    k("v_readfirstlane_b32 s16, v2")
    k("s_lshr_b32 s15, s2, 3")
    k("s_lshl_b32 s14, s14, 5")
    k("s_add_u32 s14, s14, s15")
    k("s_lshr_b32 s17, s16, 1")
    k("s_and_b32 s18, s16, 1")
    k("s_lshl_b32 s19, s14, 1")
    k("s_add_u32 s19, s19, s17")
    k("s_lshl_b32 s19, s19, 12")
    k("v_and_b32 v3, 15, v1")
    k("v_lshrrev_b32 v4, 4, v1")
    k("s_lshl_b32 s36, s18, 11")
    k("v_lshl_add_u32 v5, v1, 4, s36")
    k("v_subrev_u32 v6, 16, v5")
    k("v_subrev_u32 v7, 480, v5")
    k("v_add_u32 v8, 1024, v7")
    k("v_add_u32 v9, 2048, v7")
    k("v_lshlrev_b32 v10, 4, v3")
    k("v_lshlrev_b32 v11, 2, v4")
    k("v_sub_u32 v10, v10, v11")
    k("v_add_u32 v10, 12, v10")
    k("s_lshl_b32 s37, s18, 10")
    k("v_add_u32 v10, s37, v10")
    k("v_lshlrev_b32 v11, 1, v10")
    k("v_lshlrev_b32 v12, 2, v10")
    k("s_mul_i32 s38, s17, %d" % KV_BYTES)
    k(f"s_add_u32 s38, s38, {KV_BASE}")
    k("s_add_u32 s39, s38, s36")
    k("s_waitcnt lgkmcnt(0)")
    k("s_add_u32 s20, s4, s19")
    k("s_addc_u32 s21, s5, 0")
    k("s_mov_b32 s22, 4096")
    k("s_mov_b32 s23, 0x00020000")
    k("s_add_u32 s24, s12, s19")
    k("s_addc_u32 s25, s13, 0")
    k("s_mov_b32 s26, 4096")
    k("s_mov_b32 s27, 0x00020000")
    k("s_lshl_b32 s40, s14, 2")
    k("s_load_dword s41, s[6:7], s40")
    tD = []
    for j in range(2):
        tD.append(k(f"buffer_load_dwordx4 v[{16+8*j}:{19+8*j}], v5, s[20:23], 0 offen offset:{1024*j}"))
        if j == 0:
            tD.append(k(f"buffer_load_dwordx4 v[{20+8*j}:{23+8*j}], v6, s[20:23], 0 offen"))
        else:
            tD.append(k(f"buffer_load_dwordx4 v[{20+8*j}:{23+8*j}], v5, s[20:23], 0 offen offset:{1024*j-16}"))
    tkv = None
    for j in range(3):
        k(f"s_add_u32 m0, s39, {1024*j}")
        tkv = k(f"buffer_load_dwordx4 v{7+j}, s[24:27], 0 offen lds")
    k(f"s_add_u32 s28, s24, {XT_OFF:#x}")
    k("s_addc_u32 s29, s25, 0")
    k("s_mov_b32 s30, 4096")
    k("s_mov_b32 s31, 0x00020000")
    srd(k, 32, 12, 13, 8192, STATS_OFF)
    for tt in range(4):
        k(f"buffer_load_dwordx2 v[{32+2*tt}:{33+2*tt}], v11, s[28:31], 0 offen offset:{512*tt}")
    for tt in range(4):
        tep = k(f"buffer_load_dwordx4 v[{40+4*tt}:{43+4*tt}], v12, s[32:35], 0 offen offset:{1024*tt}")
    k(f"s_add_u32 s28, s24, {HT_OFF:#x}")
    k("s_addc_u32 s29, s25, 0")
    k("s_mul_i32 s42, s17, %d" % KC_BYTES)
    k("s_add_u32 s43, s42, 4080")
    k("v_sub_u32 v13, s43, v5")
    k("v_subrev_u32 v14, 1024, v13")
    k("v_and_b32 v15, 7, v1")
    k(f"v_mul_u32_u24 v15, {CSTR}, v15")
    k("v_add_u32 v15, s42, v15")
    for r in range(4):
        k(f"v_mov_b32 v{56+r}, 0")
    k("ds_write_b128 v15, v[56:59] offset:4096")
    k("v_and_b32 v60, 7, v3")
    k(f"v_mul_u32_u24 v60, {CSTR}, v60")
    k("v_lshrrev_b32 v61, 3, v3")
    k("v_add_u32 v61, v61, v4")
    k("v_lshl_add_u32 v60, v61, 4, v60")
    k("s_lshl_b32 s44, s18, 6")
    k("s_sub_u32 s45, s42, s44")
    k(f"s_add_u32 s45, s45, {4032 - 128*31}")
    k("v_add_u32 v60, s45, v60")
    k("v_lshlrev_b32 v61, 5, v3")
    k("v_lshl_add_u32 v61, v4, 4, v61")
    k("s_sub_u32 s46, s38, s44")
    k(f"s_add_u32 s46, s46, {448 - 384}")
    k("v_add_u32 v61, s46, v61")
    k("s_add_u32 s47, s38, 480")
    k("v_add_u32 v62, s47, v11")
    k("s_lshl_b32 s48, s16, 12")
    k(f"s_add_u32 s48, s48, {EX_BASE}")
    k("v_lshl_add_u32 v63, v1, 4, s48")
    k("v_xor_b32 v64, 4096, v63")
    assert EX_BASE % 8192 == 0 or True
    k("s_mov_b32 s49, 0xffff")
    EA, EB, OA, OB = 68, 77, 84, 93
    for j in range(2):
        Dn = [16 + 8 * j + 3, 16 + 8 * j + 2, 16 + 8 * j + 1, 16 + 8 * j + 0,
              20 + 8 * j + 3, 20 + 8 * j + 2, 20 + 8 * j + 1, 20 + 8 * j + 0]
        k.wait(tD[2 * j + 1])
        if j == 0:
            prof_stamp(k, 1)
        for w in range(6):
            k(f"v_alignbit_b32 v{EA+w}, v{Dn[w]}, v{Dn[w]}, 16")
        for w in range(6):
            k(f"v_bfi_b32 v{OA+w}, s49, v{Dn[w]}, v{Dn[w+1]}")
        for w in range(1, 7):
            k(f"v_alignbit_b32 v{EB+w}, v{Dn[w]}, v{Dn[w]}, 16")
        for w in range(1, 7):
            k(f"v_bfi_b32 v{OB+w}, s49, v{Dn[w]}, v{Dn[w+1]}")
        ad = 13 + j
        for a in range(4):
            if a % 2 == 0:
                e, o = EA + a, OA + a
            else:
                e, o = EB + a, OB + a
            assert e % 2 == 0 and o % 2 == 0
            k(f"ds_write_b128 v{ad}, v[{e}:{e+3}] offset:{(2*a)*CSTR}")
            k(f"ds_write_b128 v{ad}, v[{o}:{o+3}] offset:{(2*a+1)*CSTR}")
        if j == 0:
            k("s_waitcnt lgkmcnt(0)")
    k.wait(tkv)
    k("s_waitcnt lgkmcnt(0)")
    prof_stamp(k, 2)
    k("s_barrier")
    prof_stamp(k, 3)
    ACC = 100
    AR = 132
    NA = 6
    k.lg = 0
    btok = {}
    atok = {}

    def loadA(a):
        r = AR + 4 * (a % NA)
        atok[a] = k(f"ds_read_b128 v[{r}:{r+3}], v60 offset:{128*(31-a)}")

    def loadB(c):
        btok[c] = k(f"ds_read_b128 a[{4*(c+3)}:{4*(c+3)+3}], v61 offset:{128*(c+3)}")

    work = []
    for a in range(32):
        for t in range(7, a // 4 - 1, -1):
            work.append((a, t))
    needs = []
    seenA, seenB = set(), set()
    for (a, t) in work:
        n = []
        if a not in seenA:
            seenA.add(a)
            n.append(("A", a))
        c = 4 * t - a
        if c not in seenB:
            seenB.add(c)
            n.append(("B", c))
        needs.append(n)
    flat = [(i, x) for i, n in enumerate(needs) for x in n]
    LOOK = 10
    issued = 0
    first = set()
    lastA_use = {}
    for i, (a, t) in enumerate(work):
        lastA_use[a] = i
    for i, (a, t) in enumerate(work):
        while issued < len(flat):
            idx, (kind, v) = flat[issued]
            pend = sum(1 for q in range(issued) if flat[q][0] > i)
            if idx > i and pend >= LOOK:
                break
            if kind == "A" and v >= NA and lastA_use[v - NA] >= i:
                break
            (loadA if kind == "A" else loadB)(v)
            issued += 1
        c = 4 * t - a
        toks = []
        if needs[i]:
            toks = [atok[a], btok[c]]
            k.wait(*toks)
        r = AR + 4 * (a % NA)
        acc = ACC + 4 * t
        cc = "0" if t not in first else f"v[{acc}:{acc+3}]"
        first.add(t)
        k(f"v_mfma_f32_16x16x32_bf16 v[{acc}:{acc+3}], v[{r}:{r+3}], a[{4*(c+3)}:{4*(c+3)+3}], {cc}")
    prof_stamp(k, 4)
    k("s_cmp_eq_u32 s18, 0")
    k("s_cbranch_scc1 L_conv_noswap")
    for r in range(16):
        k(f"v_swap_b32 v{ACC+r}, v{ACC+16+r}")
    k("L_conv_noswap:")
    k("s_nop 7")
    for tt in range(4):
        r = ACC + 16 + 4 * tt
        k(f"ds_write_b128 v63, v[{r}:{r+3}] offset:{1024*tt}")
    kvt = []
    for tt in range(4):
        kvt.append(k(f"ds_read_b64 v[{68+2*tt}:{69+2*tt}], v62 offset:{512*tt}"))
    k("s_lshl_b32 s50, s41, 16")
    k("s_and_b32 s51, s41, 0xffff0000")
    k("s_cmp_eq_u32 s17, 0")
    k("s_cselect_b32 s50, s50, s51")
    k("s_mov_b32 s51, 0xffff0000")
    k("s_waitcnt lgkmcnt(0)")
    k("s_barrier")
    for tt in range(4):
        r = 132 + 4 * tt
        k(f"ds_read_b128 v[{r}:{r+3}], v64 offset:{1024*tt}")
    k.wait(tep)
    for tt in range(4):
        for e in range(4):
            xs = 32 + 2 * tt + e // 2
            xf = 148 + 4 * tt + e
            q = 164 + 4 * tt + e
            st = 40 + 4 * tt + e
            if e % 2 == 0:
                k(f"v_lshlrev_b32 v{xf}, 16, v{xs}")
            else:
                k(f"v_and_b32 v{xf}, s51, v{xs}")
            k(f"v_lshlrev_b32 v{q}, 16, v{st}")
            k(f"v_and_b32 v{st}, s51, v{st}")
            k(f"v_rcp_f32 v{st}, v{st}")
            k(f"v_sub_f32 v{q}, v{xf}, v{q}")
            k(f"v_mul_f32 v{q}, v{q}, v{st}")
    k("s_waitcnt lgkmcnt(0)")
    for tt in range(4):
        for e in range(4):
            acc = ACC + 4 * tt + 3 - e
            oth = 132 + 4 * tt + 3 - e
            ks = 68 + 2 * tt + e // 2
            kf = 40 + 4 * tt + e
            if e % 2 == 0:
                k(f"v_lshlrev_b32 v{kf}, 16, v{ks}")
            else:
                k(f"v_and_b32 v{kf}, s51, v{ks}")
            k(f"v_add_f32 v{acc}, v{acc}, v{oth}")
            k(f"v_fmac_f32 v{acc}, s50, v{kf}")
            xf = 148 + 4 * tt + e
            q = 164 + 4 * tt + e
            k(f"v_fmac_f32 v{xf}, v{q}, v{acc}")
        o = 32 + 2 * tt
        xf = 148 + 4 * tt
        k(f"v_cvt_pk_bf16_f32 v{o}, v{xf}, v{xf+1}")
        k(f"v_cvt_pk_bf16_f32 v{o+1}, v{xf+2}, v{xf+3}")
        k(f"buffer_store_dwordx2 v[{o}:{o+1}], v11, s[28:31], 0 offen offset:{512*tt}")
    prof_stamp(k, 5)
    prof_end(k, 1, 4)
    k("L_conv_end:")
    k("s_endpgm")
    return k.finish(), 180, 128
```

```python
from asmgen import Stream, prof_begin, prof_stamp, prof_end
from layout import *
from k_prep import srd

SLOT = 16384
NSLOT = 9
H_BASE = SLOT * NSLOT
LDS = H_BASE + 8192
NST = 28


def map_wg(k, mode):
    k("s_and_b32 s16, s2, 7")
    k("s_lshr_b32 s17, s2, 3")
    if mode == "4x7":
        k("s_mul_i32 s18, s17, 37")
        k("s_lshr_b32 s18, s18, 8")
        k("s_lshl_b32 s14, s16, 2")
        k("s_add_u32 s14, s14, s18")
        k("s_mul_i32 s18, s18, 7")
        k("s_sub_u32 s15, s17, s18")
    elif mode == "plain":
        k("s_and_b32 s14, s2, 31")
        k("s_lshr_b32 s15, s2, 5")
    else:
        raise ValueError(mode)


def gen_loader(k, opts):
    k.vm = 0
    k.lg = 0
    k("s_sub_u32 s19, s19, 4")
    k("v_lshrrev_b32 v2, 3, v1")
    k("v_and_b32 v3, 7, v1")
    k("v_bfe_u32 v4, v1, 4, 1")
    k("v_lshlrev_b32 v4, 2, v4")
    k("v_xor_b32 v3, v3, v4")
    k("s_lshl_b32 s36, s19, 3")
    k("v_add_u32 v2, s36, v2")
    k("v_mul_u32_u24 v4, 896, v2")
    k("v_lshl_add_u32 v4, v3, 4, v4")
    k(f"v_add_u32 v5, {32*896}, v4")
    k("v_lshlrev_b32 v6, 12, v2")
    k("v_lshl_add_u32 v6, v3, 4, v6")
    k(f"v_add_u32 v7, {32*4096}, v6")
    k("s_lshl_b32 s37, s19, 10")
    k("v_lshl_add_u32 v8, v1, 4, s37")
    k(f"v_add_u32 v9, {112*1024}, v8")
    k("s_lshl_b32 s38, s15, 7")
    k(f"s_mul_i32 s39, s14, {2*112*1024}")
    k("s_lshl_b32 s40, s15, 18")
    k("s_lshl_b32 s41, s14, 7")
    k("s_add_u32 s40, s40, s41")
    k("s_waitcnt lgkmcnt(0)")
    k(f"s_add_u32 s41, s39, {HH_OFF:#x}")
    k("s_add_u32 s20, s12, s41")
    k("s_addc_u32 s21, s13, 0")
    k(f"s_mov_b32 s22, {2*112*1024:#x}")
    k("s_mov_b32 s23, 0x00020000")
    k("s_add_u32 s24, s4, s38")
    k("s_addc_u32 s25, s5, 0")
    k(f"s_sub_u32 s26, {W_BYTES:#x}, s38")
    k("s_mov_b32 s27, 0x00020000")
    k(f"s_add_u32 s41, s40, {HT_OFF:#x}")
    k("s_add_u32 s28, s12, s41")
    k("s_addc_u32 s29, s13, 0")
    k(f"s_sub_u32 s30, {SD_BYTES:#x}, s40")
    k("s_mov_b32 s31, 0x00020000")
    last = {}

    def issue(j):
        slot = j % NSLOT
        k(f"s_mov_b32 s41, {j*4096:#x}")
        k(f"s_mov_b32 s42, {j*64*896:#x}")
        for i in range(2):
            k(f"s_add_u32 m0, s37, {slot*SLOT + i*4096:#x}")
            k(f"buffer_load_dwordx4 v{8+i}, s[20:23], s41 offen lds")
            k(f"s_add_u32 m0, s37, {slot*SLOT + 8192 + i*4096:#x}")
            last[j] = k(f"buffer_load_dwordx4 v{4+i}, s[24:27], s42 offen lds")

    issue(0)
    for i in range(2):
        k(f"s_add_u32 m0, s37, {H_BASE + i*4096:#x}")
        last[0] = k(f"buffer_load_dwordx4 v{6+i}, s[28:31], 0 offen lds")
    for j in range(1, NSLOT):
        issue(j)
    for j in range(NST):
        k.wait(last[j])
        if j == 0:
            prof_stamp(k, 1)
        k("s_barrier")
        if j >= 2 and j + NSLOT - 2 < NST:
            issue(j + NSLOT - 2)
    prof_end(k, 3, 4)
    k("s_endpgm")


FR = 32
ACC = 96


def gen_mfma(k, opts):
    k.vm = 0
    k.lg = 0
    k("s_and_b32 s36, s19, 1")
    k("s_lshr_b32 s37, s19, 1")
    def trb(vd, tsg):
        k("v_bfe_u32 v13, v1, 2, 2")
        k("v_lshrrev_b32 v14, 5, v1")
        k("v_lshl_add_u32 v14, v14, 2, v13")
        k(f"v_lshlrev_b32 v{vd}, 7, v14")
        k("v_lshrrev_b32 v13, 1, v13")
        k(f"v_xor_b32 v13, {tsg}, v13")
        k(f"v_lshl_add_u32 v{vd}, v13, 6, v{vd}")
        k("v_bfe_u32 v13, v1, 4, 1")
        k(f"v_lshl_add_u32 v{vd}, v13, 5, v{vd}")
        k("v_and_b32 v13, 3, v1")
        k(f"v_lshl_add_u32 v{vd}, v13, 3, v{vd}")
    trb(4, "s36")
    k("v_add_u32 v4, 8192, v4")
    k(f"v_add_u32 v5, {3*SLOT}, v4")
    k(f"v_add_u32 v6, {6*SLOT}, v4")
    k("s_lshl_b32 s38, s37, 12")
    k("v_lshl_add_u32 v7, v1, 4, s38")
    k(f"v_add_u32 v8, {3*SLOT}, v7")
    k(f"v_add_u32 v9, {6*SLOT}, v7")
    trb(10, "s37")
    k("s_lshl_b32 s38, s36, 12")
    k(f"s_add_u32 s38, s38, {H_BASE}")
    k("v_add_u32 v10, s38, v10")
    k("v_and_b32 v13, 31, v1")
    k("v_lshrrev_b32 v14, 5, v1")
    k("v_lshlrev_b32 v14, 2, v14")
    k("v_sub_u32 v13, v13, v14")
    k("v_mov_b32 v14, 0x3f80")
    k("v_mov_b32 v15, 0x3f800000")
    for t in range(2):
        for w in range(4):
            k0 = 16 * t + 8 * (w // 2) + 2 * (w % 2)
            r = 16 + 4 * t + w
            k(f"v_cmp_eq_u32 vcc, {k0}, v13")
            k(f"v_cndmask_b32 v{r}, 0, v14, vcc")
            k(f"v_cmp_eq_u32 vcc, {k0+1}, v13")
            k(f"v_cndmask_b32 v{r}, v{r}, v15, vcc")
    k("s_lshl_b32 s38, s14, 6")
    k("s_lshl_b32 s39, s37, 5")
    k("s_add_u32 s38, s38, s39")
    k("v_and_b32 v13, 31, v1")
    k("v_add_u32 v13, s38, v13")
    k("v_mul_u32_u24 v3, 896, v13")
    k("v_lshrrev_b32 v14, 5, v1")
    k("v_lshl_add_u32 v3, v14, 4, v3")
    k("s_lshl_b32 s38, s15, 7")
    k("s_lshl_b32 s39, s36, 6")
    k("s_add_u32 s38, s38, s39")
    k("v_add_u32 v3, s38, v3")
    k("s_waitcnt lgkmcnt(0)")
    srd(k, 20, 6, 7, SD_BYTES)

    tok = {}

    def reads(j):
        slot = j % NSLOT
        b = slot // 3
        base = (slot % 3) * SLOT
        fb = FR + 32 * (j % 2)
        out = []
        for q in range(4):
            def f(q=q):
                r = fb + 8 * q
                k(f"ds_read_b64_tr_b16 v[{r}:{r+1}], v{4+b} offset:{base + q*16*128}")
                k(f"ds_read_b64_tr_b16 v[{r+2}:{r+3}], v{4+b} offset:{base + q*16*128 + 8*128}")
                tok[(j, q)] = k(f"ds_read_b128 v[{r+4}:{r+7}], v{7+b} offset:{base + q*1024}")
            out.append(f)
        return out

    def mfma(j, q):
        r = FR + 32 * (j % 2) + 8 * q
        k.wait(tok[(j, q)])
        k(f"v_mfma_f32_32x32x16_bf16 v[{ACC}:{ACC+15}], v[{r}:{r+3}], v[{r+4}:{r+7}], v[{ACC}:{ACC+15}]")

    k("s_barrier")
    prof_stamp(k, 1)
    th = []
    for t in range(2):
        k(f"ds_read_b64_tr_b16 v[{24+4*t}:{25+4*t}], v10 offset:{t*16*128}")
        th.append(k(f"ds_read_b64_tr_b16 v[{26+4*t}:{27+4*t}], v10 offset:{t*16*128 + 8*128}"))
    for f in reads(0):
        f()
    k.wait(th[0])
    k(f"v_mfma_f32_32x32x16_bf16 v[{ACC}:{ACC+15}], v[16:19], v[24:27], 0")
    k.wait(th[1])
    k(f"v_mfma_f32_32x32x16_bf16 v[{ACC}:{ACC+15}], v[20:23], v[28:31], v[{ACC}:{ACC+15}]")
    for j in range(NST):
        if j + 1 < NST:
            k("s_barrier")
            rd = reads(j + 1)
            for q in range(4):
                rd[q]()
                mfma(j, q)
        else:
            prof_stamp(k, 2)
            for q in range(4):
                mfma(j, q)
    for q in range(4):
        for p in range(2):
            k(f"v_cvt_pk_bf16_f32 v{32+2*q+p}, v{ACC+4*q+2*p}, v{ACC+4*q+2*p+1}")
    for p in range(2):
        a = 32 + 4 * p
        k(f"v_permlane32_swap_b32 v{a}, v{a+2}")
        k(f"v_permlane32_swap_b32 v{a+1}, v{a+3}")
    for p in range(2):
        a = 32 + 4 * p
        k(f"buffer_store_dwordx4 v[{a}:{a+3}], v3, s[20:23], 0 offen offset:{32*p}")
    prof_stamp(k, 3)
    prof_end(k, 3, 4)
    k("s_endpgm")


def gen_down(opts):
    k = Stream()
    k("s_cmp_ge_u32 s2, 224")
    k("s_cbranch_scc1 L_dn_end")
    prof_begin(k)
    k("s_load_dwordx4 s[4:7], s[0:1], 72")
    k("s_load_dwordx2 s[12:13], s[0:1], 96")
    k("v_lshrrev_b32 v2, 6, v0")
    k("v_and_b32 v1, 63, v0")
    k("v_readfirstlane_b32 s19, v2")
    map_wg(k, opts.get("dn_map", "4x7"))
    k("s_cmp_lt_u32 s19, 4")
    k("s_cbranch_scc1 L_dn_mfma")
    gen_loader(k, opts)
    k("L_dn_mfma:")
    gen_mfma(k, opts)
    k("L_dn_end:")
    k("s_endpgm")
    return k.finish(), 112, 0
```

```python
from asmgen import Stream, prof_begin, prof_stamp, prof_end
from layout import *
from k_prep import srd

SLOT = 24576
NSLOT = 6
ST_BASE = SLOT * NSLOT
CX_BASE = ST_BASE + 2048
LDS = CX_BASE + 4096
NST = 14
LOG2E = 1.4426950408889634


def map_wg(k, mode):
    k("s_and_b32 s16, s2, 7")
    k("s_lshr_b32 s17, s2, 3")
    if mode == "rows":
        k("s_cmp_ge_u32 s17, 14")
        k("s_cselect_b32 s18, 1, 0")
        k("s_lshl_b32 s14, s16, 1")
        k("s_add_u32 s14, s14, s18")
        k("s_mul_i32 s18, s18, 14")
        k("s_sub_u32 s15, s17, s18")
    elif mode == "4x7":
        k("s_mul_i32 s18, s17, 37")
        k("s_lshr_b32 s18, s18, 8")
        k("s_lshr_b32 s14, s16, 1")
        k("s_lshl_b32 s14, s14, 2")
        k("s_add_u32 s14, s14, s18")
        k("s_mul_i32 s18, s18, 7")
        k("s_sub_u32 s15, s17, s18")
        k("s_and_b32 s18, s16, 1")
        k("s_mul_i32 s18, s18, 7")
        k("s_add_u32 s15, s15, s18")
    elif mode == "plain":
        k("s_and_b32 s14, s2, 15")
        k("s_lshr_b32 s15, s2, 4")
    else:
        raise ValueError(mode)


def tr_base(k, vdst, vlane, vt0, vt1, t2_sgpr, rowb=256):
    k(f"v_bfe_u32 v{vt0}, v{vlane}, 2, 2")
    k(f"v_lshrrev_b32 v{vt1}, 5, v{vlane}")
    k(f"v_lshl_add_u32 v{vt1}, v{vt1}, 2, v{vt0}")
    k(f"v_mul_u32_u24 v{vdst}, {rowb}, v{vt1}")
    k(f"v_xor_b32 v{vt0}, {t2_sgpr}, v{vt0}")
    k(f"v_lshl_add_u32 v{vdst}, v{vt0}, 6, v{vdst}")
    k(f"v_bfe_u32 v{vt0}, v{vlane}, 4, 1")
    k(f"v_lshl_add_u32 v{vdst}, v{vt0}, 5, v{vdst}")
    k(f"v_and_b32 v{vt0}, 3, v{vlane}")
    k(f"v_lshl_add_u32 v{vdst}, v{vt0}, 3, v{vdst}")


def gen_loader(k, opts):
    k.vm = 0
    k.lg = 0
    k("s_sub_u32 s19, s19, 8")
    k("v_lshrrev_b32 v2, 4, v1")
    k("v_and_b32 v3, 15, v1")
    k("v_lshlrev_b32 v4, 2, v2")
    k("v_xor_b32 v3, v3, v4")
    k("s_lshl_b32 s36, s19, 2")
    k("v_add_u32 v2, s36, v2")
    k("v_lshlrev_b32 v4, 12, v2")
    k("v_lshl_add_u32 v4, v3, 4, v4")
    k("v_add_u32 v5, 0x10000, v4")
    k("v_mul_u32_u24 v6, 3584, v2")
    k("v_lshl_add_u32 v6, v3, 4, v6")
    k(f"v_add_u32 v7, {16*3584}, v6")
    k("s_lshl_b32 s37, s19, 10")
    k("s_lshl_b32 s38, s14, 8")
    k("s_lshl_b32 s39, s15, 8")
    k("s_waitcnt lgkmcnt(0)")
    k(f"s_add_u32 s40, s38, {HT_OFF:#x}")
    k("s_add_u32 s20, s12, s40")
    k("s_addc_u32 s21, s13, 0")
    k(f"s_sub_u32 s22, {SD_BYTES:#x}, s38")
    k("s_mov_b32 s23, 0x00020000")
    k("s_add_u32 s24, s4, s39")
    k("s_addc_u32 s25, s5, 0")
    k(f"s_sub_u32 s26, {W_BYTES:#x}, s39")
    k("s_mov_b32 s27, 0x00020000")
    k("s_add_u32 s28, s6, s39")
    k("s_addc_u32 s29, s7, 0")
    k("s_mov_b32 s30, s26")
    k("s_mov_b32 s31, 0x00020000")
    last = {}

    def issue(j):
        slot = j % NSLOT
        k(f"s_mov_b32 s41, {j*32*4096:#x}")
        k(f"s_mov_b32 s42, {j*32*3584:#x}")
        for i in range(2):
            for img, (vr, sr, so) in enumerate(((4, 20, 41), (6, 24, 42), (6, 28, 42))):
                k(f"s_add_u32 m0, s37, {slot*SLOT + img*8192 + i*4096:#x}")
                last[j] = k(f"buffer_load_dwordx4 v{vr+i}, s[{sr}:{sr+3}], s{so} offen lds")

    for j in range(NSLOT):
        issue(j)
    tr_base(k, 8, 1, 11, 12, "s19")
    k(f"v_add_u32 v9, {2*SLOT}, v8")
    k(f"v_add_u32 v10, {4*SLOT}, v8")
    k("v_mov_b32 v14, 0")
    k("v_mov_b32 v15, 0")
    k("s_mov_b32 s45, 0x3f803f80")
    k("v_and_b32 v13, 31, v1")
    k("s_lshl_b32 s46, s19, 9")
    k(f"s_add_u32 s46, s46, {ST_BASE}")
    k("v_lshl_add_u32 v13, v13, 4, s46")
    for j in range(NST):
        k.wait(last[j])
        if j == 0:
            prof_stamp(k, 1)
        k("s_barrier")
        if j >= 2 and j + 4 < NST:
            issue(j + 4)
        slot = j % NSLOT
        t = None
        for q in range(4):
            t = k(f"ds_read_b64_tr_b16 v[{16+2*q}:{17+2*q}], v{8+slot//2} offset:{(slot%2)*SLOT + q*8*256}")
        k.wait(t)
        for q in range(8):
            k(f"v_dot2_f32_bf16 v14, v{16+q}, s45, v14")
            k(f"v_dot2_f32_bf16 v15, v{16+q}, v{16+q}, v15")
    prof_stamp(k, 2)
    k("v_mov_b32 v16, v14")
    k("v_mov_b32 v17, v15")
    k("v_permlane32_swap_b32 v14, v16")
    k("v_permlane32_swap_b32 v15, v17")
    k("v_add_f32 v14, v14, v16")
    k("v_add_f32 v15, v15, v17")
    k(f"v_mul_f32 v14, {f2h(1.0/448.0)}, v14")
    k(f"v_mul_f32 v15, {f2h(1.0/448.0)}, v15")
    k("v_fma_f32 v15, -v14, v14, v15")
    k("v_max_f32 v15, 0, v15")
    k("v_cvt_pk_bf16_f32 v16, v15, v15")
    k("v_lshlrev_b32 v16, 16, v16")
    k(f"v_add_f32 v16, {f2h(1e-5)}, v16")
    k("v_cvt_pk_bf16_f32 v16, v16, v16")
    k("v_lshlrev_b32 v16, 16, v16")
    k("v_sqrt_f32 v16, v16")
    k("v_cvt_pk_bf16_f32 v20, -v14, -v14")
    k("v_cvt_pk_bf16_f32 v16, v16, v16")
    k("v_lshlrev_b32 v16, 16, v16")
    k("v_rcp_f32 v22, v16")
    k("v_mov_b32 v21, v20")
    k("v_mul_f32 v23, v16, v16")
    k(f"v_mul_f32 v22, {f2h(-LOG2E)}, v22")
    k("ds_write_b128 v13, v[20:23]")
    k("s_waitcnt lgkmcnt(0)")
    k("s_barrier")
    prof_end(k, 2, 4)
    k("s_endpgm")


FR = 32
ACC = 64


def gen_mfma(k, sh, opts):
    k.vm = 0
    k.lg = 0
    k("s_and_b32 s36, s19, 3")
    tr_base(k, 4, 1, 13, 14, "s36")
    k(f"v_add_u32 v5, {2*SLOT}, v4")
    k(f"v_add_u32 v6, {4*SLOT}, v4")
    tr_base(k, 7, 1, 13, 14, str(2 * sh))
    k(f"v_add_u32 v8, {2*SLOT}, v7")
    k(f"v_add_u32 v9, {4*SLOT}, v7")
    for b in range(3):
        k(f"v_xor_b32 v{10+b}, 64, v{7+b}")
    k("v_mov_b32 v13, 0")
    for r in (18, 19, 22, 23, 26, 27, 30, 31):
        k(f"v_mov_b32 v{r}, 0")
    k("s_mov_b32 s45, 0x3f803f80")
    k("s_mov_b32 s46, 0xffff0000")
    k("s_lshl_b32 s37, s36, 10")
    k(f"s_add_u32 s37, s37, {CX_BASE}")
    k("v_lshl_add_u32 v14, v1, 3, s37")
    k("v_and_b32 v15, 31, v1")
    k(f"v_lshlrev_b32 v15, 4, v15")
    k("s_lshl_b32 s38, s14, 2")
    k(f"s_add_u32 s38, s38, {2*sh}")
    k("s_mul_i32 s38, s38, 112")
    k("s_lshl_b32 s39, s15, 3")
    k("s_add_u32 s38, s38, s39")
    k("s_lshl_b32 s39, s36, 1")
    k("s_add_u32 s38, s38, s39")
    k("s_lshl_b32 s38, s38, 10")
    k(f"s_add_u32 s39, s38, {112*1024}")
    k("v_lshlrev_b32 v3, 4, v1")
    k("s_waitcnt lgkmcnt(0)")
    srd(k, 20, 12, 13, HH_BYTES, HH_OFF)

    tok = {}

    def reads(t):
        j, hk = t // 2, t % 2
        slot = j % NSLOT
        b = slot // 2
        base = (slot % 2) * SLOT + hk * 16 * 256
        fb = FR + 16 * (t % 2)
        out = []
        for name, ar, img, ro in (("A1", 4, 8192, 0), ("B0", 7, 0, 8), ("A3", 4, 16384, 4), ("B1", 10, 0, 12)):
            for rho in range(2):
                def f(name=name, ar=ar, img=img, ro=ro, rho=rho):
                    r = fb + ro + 2 * rho
                    tok[(t, name)] = k(f"ds_read_b64_tr_b16 v[{r}:{r+1}], v{ar+b} offset:{base + img + rho*8*256}")
                out.append(f)
        return out

    def mfma(t, idx):
        fb = FR + 16 * (t % 2)
        a, bb, acc, need = ((0, 8, 0, ("A1", "B0")), (4, 8, 16, ("A3",)), (0, 12, 32, ("B1",)), (4, 12, 48, ()))[idx]
        k.wait(*[tok[(t, n)] for n in need])
        c = "0" if t == 0 else f"v[{ACC+acc}:{ACC+acc+15}]"
        k(f"v_mfma_f32_32x32x16_bf16 v[{ACC+acc}:{ACC+acc+15}], v[{fb+a}:{fb+a+3}], v[{fb+bb}:{fb+bb+3}], {c}")

    def dots(t, qs):
        fb = FR + 16 * (t % 2) + 4 * sh
        for q in qs:
            k(f"v_dot2_f32_bf16 v13, v{fb+q}, s45, v13")

    k("s_barrier")
    prof_stamp(k, 1)
    for f in reads(0):
        f()
    NT = 2 * NST
    for t in range(NT):
        if t + 1 < NT:
            rd = reads(t + 1)
            if t % 2 == 1:
                mfma(t, 0)
                k("s_barrier")
                rd[0](); rd[1](); rd[2]()
                mfma(t, 1)
                rd[3](); rd[4](); rd[5]()
                dots(t, (0,))
                mfma(t, 2)
                rd[6](); rd[7]()
                dots(t, (1,))
                mfma(t, 3)
                dots(t, (2, 3))
            else:
                for i in range(4):
                    mfma(t, i)
                    rd[2 * i](); rd[2 * i + 1]()
                    if i >= 1:
                        dots(t, (i,) if i > 1 else (0, 1))
        else:
            prof_stamp(k, 2)
            mfma(t, 0)
            mfma(t, 1)
            dots(t, (0, 1, 2, 3))
            own = 16 + 4 * sh
            oth = 16 + 4 * (1 - sh)
            k("v_cvt_pk_bf16_f32 v132, v13, v13")
            k("v_lshlrev_b32 v132, 16, v132")
            k("v_sub_f32 v132, v13, v132")
            k(f"v_cvt_pk_bf16_f32 v{own}, v13, v132")
            k(f"v_and_b32 v133, s46, v{own}")
            k("v_sub_f32 v132, v132, v133")
            k(f"v_cvt_pk_bf16_f32 v{own+1}, v132, 0")
            k(f"ds_write_b64 v14, v[{own}:{own+1}] offset:{512*sh}")
            mfma(t, 2)
            k("s_waitcnt lgkmcnt(0)")
            k("s_barrier")
            to = k(f"ds_read_b64 v[{oth}:{oth+1}], v14 offset:{512*(1-sh)}")
            ts = []
            for st in range(2):
                o = ST_BASE + (2 * sh + st) * 512
                assert o + 8 < 65536 * 3
                pass
            k(f"v_add_u32 v15, {ST_BASE + 2*sh*512}, v15")
            for st in range(2):
                k(f"ds_read_b64 v[{24+4*st}:{25+4*st}], v15 offset:{512*st}")
            for st in range(2):
                ts.append(k(f"ds_read_b64 v[{128+2*st}:{129+2*st}], v15 offset:{512*st+8}"))
            mfma(t, 3)
            k.wait(ts[-1])
    prof_stamp(k, 3)
    for (a, bb, acc) in ((16, 24, 0), (20, 24, 16), (16, 28, 32), (20, 28, 48)):
        k(f"v_mfma_f32_32x32x16_bf16 v[{ACC+acc}:{ACC+acc+15}], v[{a}:{a+3}], v[{bb}:{bb+3}], v[{ACC+acc}:{ACC+acc+15}]")
    T = 132
    for st in range(2):
        G = ACC + 32 * st
        U = G + 16
        nrl, ir2 = 128 + 2 * st, 129 + 2 * st
        for half in range(2):
            rs = range(8 * half, 8 * half + 8)
            for r in rs:
                k(f"v_mul_f32 v{T+r%8}, v{nrl}, v{G+r}")
            for r in rs:
                k(f"v_exp_f32 v{T+r%8}, v{T+r%8}")
                k(f"v_mul_f32 v{G+r}, v{G+r}, v{U+r}")
            for r in rs:
                k(f"v_fma_f32 v{T+r%8}, v{T+r%8}, v{ir2}, v{ir2}")
            for r in rs:
                k(f"v_rcp_f32 v{T+r%8}, v{T+r%8}")
            for r in rs:
                k(f"v_mul_f32 v{G+r}, v{G+r}, v{T+r%8}")
            o = 32 + 8 * st + 4 * half
            for p in range(4):
                k(f"v_cvt_pk_bf16_f32 v{o+p}, v{G+8*half+2*p}, v{G+8*half+2*p+1}")
            k(f"buffer_store_dwordx4 v[{o}:{o+3}], v3, s[20:23], s{38+st} offen offset:{1024*half}")
    prof_stamp(k, 4)
    prof_end(k, 2, 4)
    k("s_endpgm")


def gen_gateup(opts):
    k = Stream()
    k("s_cmp_ge_u32 s2, 224")
    k("s_cbranch_scc1 L_gu_end")
    prof_begin(k)
    k("s_load_dwordx4 s[4:7], s[0:1], 56")
    k("s_load_dwordx2 s[12:13], s[0:1], 96")
    k("v_lshrrev_b32 v2, 6, v0")
    k("v_and_b32 v1, 63, v0")
    k("v_readfirstlane_b32 s19, v2")
    map_wg(k, opts.get("gu_map", "4x7"))
    k("s_cmp_lt_u32 s19, 8")
    k("s_cbranch_scc1 L_gu_mfma")
    gen_loader(k, opts)
    k("L_gu_mfma:")
    k("s_cmp_lt_u32 s19, 4")
    k("s_cbranch_scc0 L_gu_mfma1")
    gen_mfma(k, 0, opts)
    k("L_gu_mfma1:")
    gen_mfma(k, 1, opts)
    k("L_gu_end:")
    k("s_endpgm")
    return k.finish(), 144, 0
```

```python
from asmgen import Stream, prof_begin, prof_stamp, prof_end
from layout import *


def srd(k, base, lo, hi, nrec, off=0):
    if off:
        k(f"s_add_u32 s{base}, s{lo}, {off:#x}")
        k(f"s_addc_u32 s{base+1}, s{hi}, 0")
    else:
        k(f"s_mov_b32 s{base}, s{lo}")
        k(f"s_mov_b32 s{base+1}, s{hi}")
    k(f"s_mov_b32 s{base+2}, {nrec:#x}")
    k(f"s_mov_b32 s{base+3}, 0x00020000")


def wave_sum_dpp(k, regs):
    for mod in ("quad_perm:[1,0,3,2]", "quad_perm:[2,3,0,1]", "row_half_mirror", "row_mirror"):
        for r in regs:
            k(f"v_add_f32_dpp v{r}, v{r}, v{r} {mod} row_mask:0xf bank_mask:0xf")
    for r in regs:
        k(f"v_add_f32_dpp v{r}, v{r}, v{r} row_bcast:15 row_mask:0xa bank_mask:0xf")
    for r in regs:
        k(f"v_add_f32_dpp v{r}, v{r}, v{r} row_bcast:31 row_mask:0xc bank_mask:0xf")


def ln_stats(k, vsum, vsq, vt0, vt1, vout):
    inv = f"{1.0/448.0:.10e}"
    k(f"v_mul_f32 v{vsum}, {f2h(1.0/448.0)}, v{vsum}")
    k(f"v_mul_f32 v{vsq}, {f2h(1.0/448.0)}, v{vsq}")
    k(f"v_fma_f32 v{vsq}, -v{vsum}, v{vsum}, v{vsq}")
    k(f"v_max_f32 v{vsq}, 0, v{vsq}")
    k(f"v_cvt_pk_bf16_f32 v{vt0}, v{vsq}, v{vsq}")
    k(f"v_lshlrev_b32 v{vt0}, 16, v{vt0}")
    k(f"v_add_f32 v{vt0}, {f2h(1e-5)}, v{vt0}")
    k(f"v_cvt_pk_bf16_f32 v{vt0}, v{vt0}, v{vt0}")
    k(f"v_lshlrev_b32 v{vt0}, 16, v{vt0}")
    k(f"v_sqrt_f32 v{vt0}, v{vt0}")
    k(f"v_cvt_pk_bf16_f32 v{vout}, v{vsum}, v{vt0}")


def gen_prep(opts):
    k = Stream()
    k("s_cmp_ge_u32 s2, 256")
    k("s_cbranch_scc1 L_prep_end")
    prof_begin(k)
    k("s_load_dwordx8 s[4:11], s[0:1], 0")
    k("s_load_dwordx2 s[12:13], s[0:1], 96")
    k("v_and_b32 v1, 63, v0")
    k("v_lshrrev_b32 v2, 6, v0")
    k("s_lshl_b32 s3, s2, 3")
    k("v_lshl_add_u32 v3, v2, 1, s3")
    k("v_mul_u32_u24 v4, 896, v3")
    k("v_lshl_add_u32 v4, v1, 4, v4")
    k("v_cmp_gt_u32 vcc, 56, v1")
    k("v_mov_b32 v5, 0x80000000")
    k("v_cndmask_b32 v4, v5, v4, vcc")
    k("v_lshlrev_b32 v3, 2, v3")
    k("s_and_b32 s14, s2, 7")
    k("s_lshr_b32 s15, s2, 3")
    k("v_and_b32 v6, 31, v0")
    k("v_lshrrev_b32 v7, 5, v0")
    k("s_lshl_b32 s36, s15, 6")
    k("v_lshl_add_u32 v7, v7, 3, s36")
    k("s_lshl_b32 s37, s14, 6")
    k("v_lshl_add_u32 v6, v6, 1, s37")
    k("v_mul_u32_u24 v8, 896, v7")
    k("v_lshl_add_u32 v8, v6, 1, v8")
    k("v_add_u32 v9, 3584, v8")
    k("v_subrev_u32 v10, 2688, v8")
    k("v_lshlrev_b32 v11, 3, v6")
    k("v_lshlrev_b32 v12, 12, v6")
    k("v_lshl_add_u32 v12, v7, 1, v12")
    k("s_waitcnt lgkmcnt(0)")
    srd(k, 16, 4, 5, SD_BYTES)
    srd(k, 32, 12, 13, WS_SMALL_END)
    t_s0 = k("buffer_load_dwordx4 v[120:123], v4, s[16:19], 0 offen")
    t_s1 = k("buffer_load_dwordx4 v[124:127], v4, s[16:19], 0 offen offset:896")
    k("s_cmp_eq_u32 s14, 7")
    k("s_cbranch_scc1 L_prep_stats_only")
    srd(k, 20, 6, 7, SD_BYTES)
    srd(k, 24, 8, 9, SD_BYTES)
    srd(k, 28, 10, 11, 448 * 8)
    KD, VD, XD = 16, 27, 35
    t_sk = k("buffer_load_dwordx4 v[44:47], v11, s[28:31], 0 offen")
    tk = []
    for r in range(3):
        tk.append(k(f"buffer_load_dword v{KD+r}, v10, s[20:23], 0 offen offset:{r*896}"))
    for r in range(8):
        b = 8 if r < 4 else 9
        tk.append(k(f"buffer_load_dword v{KD+3+r}, v{b}, s[20:23], 0 offen offset:{(r%4)*896}"))
    tv = []
    for r in range(8):
        b = 8 if r < 4 else 9
        tv.append(k(f"buffer_load_dword v{VD+r}, v{b}, s[24:27], 0 offen offset:{(r%4)*896}"))
    tx = []
    for r in range(8):
        b = 8 if r < 4 else 9
        tx.append(k(f"buffer_load_dword v{XD+r}, v{b}, s[16:19], 0 offen offset:{(r%4)*896}"))
    k("s_mov_b32 s38, 0xffff0000")
    k("s_mov_b32 s39, 0x05040100")
    k("s_mov_b32 s40, 0x07060302")
    k(f"s_mov_b32 s41, {KVT_OFF + 4096:#x}")
    k(f"s_mov_b32 s42, {XT_OFF:#x}")
    k(f"s_mov_b32 s43, {XT_OFF + 4096:#x}")
    k(f"s_mov_b32 s44, {KVT_OFF:#x}")
    k.wait(t_sk)
    for t in range(4):
        for c in range(2):
            src = 44 + 2 * c + t // 2
            if t % 2 == 0:
                k(f"v_lshlrev_b32 v{70+2*t+c}, 16, v{src}")
            else:
                k(f"v_and_b32 v{70+2*t+c}, s38, v{src}")
    k.wait(tk[-1])
    prof_stamp(k, 1)
    for r in range(11):
        k(f"v_lshlrev_b32 v{48+2*r}, 16, v{KD+r}")
        k(f"v_and_b32 v{49+2*r}, s38, v{KD+r}")
    for i in range(8):
        a = 80 + 2 * i
        k(f"v_pk_mul_f32 v[{a}:{a+1}], v[{48+2*i}:{49+2*i}], v[76:77]")
    for t in range(1, 4):
        for i in range(8):
            a = 80 + 2 * i
            kf = 48 + 2 * (i + t)
            sk = 70 + 2 * (3 - t)
            k(f"v_pk_fma_f32 v[{a}:{a+1}], v[{kf}:{kf+1}], v[{sk}:{sk+1}], v[{a}:{a+1}]")
    k.wait(tv[-1])
    for i in range(8):
        a = 80 + 2 * i
        t = 48 + 2 * i
        k(f"v_lshlrev_b32 v{t}, 16, v{VD+i}")
        k(f"v_and_b32 v{t+1}, s38, v{VD+i}")
    for i in range(8):
        a = 80 + 2 * i
        t = 48 + 2 * i
        k(f"v_pk_mul_f32 v[{a}:{a+1}], v[{a}:{a+1}], v[{t}:{t+1}]")
    for c in range(2):
        for w in range(4):
            k(f"v_cvt_pk_bf16_f32 v{100+4*c+w}, v{80+4*w+c}, v{82+4*w+c}")
    k("buffer_store_dwordx4 v[100:103], v12, s[32:35], s44 offen")
    k("buffer_store_dwordx4 v[104:107], v12, s[32:35], s41 offen")
    k.wait(tx[-1])
    for w in range(4):
        k(f"v_perm_b32 v{108+w}, v{XD+2*w+1}, v{XD+2*w}, s39")
        k(f"v_perm_b32 v{112+w}, v{XD+2*w+1}, v{XD+2*w}, s40")
    k("buffer_store_dwordx4 v[108:111], v12, s[32:35], s42 offen")
    k("buffer_store_dwordx4 v[112:115], v12, s[32:35], s43 offen")
    k("s_branch L_prep_stats")
    k("L_prep_stats_only:")
    k("s_waitcnt vmcnt(0)")
    k("L_prep_stats:")
    k("s_mov_b32 s45, 0x3f803f80")
    for row in range(2):
        b = 120 + 4 * row
        s, q = 128 + 2 * row, 129 + 2 * row
        k(f"v_mov_b32 v{s}, 0")
        k(f"v_mov_b32 v{q}, 0")
    for w in range(4):
        for row in range(2):
            b = 120 + 4 * row
            s, q = 128 + 2 * row, 129 + 2 * row
            k(f"v_dot2_f32_bf16 v{s}, v{b+w}, s45, v{s}")
            k(f"v_dot2_f32_bf16 v{q}, v{b+w}, v{b+w}, v{q}")
    wave_sum_dpp(k, [128, 129, 130, 131])
    ln_stats(k, 128, 129, 132, 133, 136)
    ln_stats(k, 130, 131, 134, 135, 137)
    k(f"s_mov_b32 s46, {STATS_OFF:#x}")
    k("v_cmp_eq_u32 vcc, 63, v1")
    k("s_and_saveexec_b64 s[48:49], vcc")
    k("buffer_store_dwordx2 v[136:137], v3, s[32:35], s46 offen")
    prof_end(k, 0, 4)
    k("L_prep_end:")
    k("s_endpgm")
    return k.finish(), 140, 0
```

```python
import struct
S, D, F = 2048, 448, 1792
SD_BYTES = S * D * 2
W_BYTES = D * F * 2
KVT_OFF = 0x000000
XT_OFF = 0x1C0000
HT_OFF = 0x380000
HR_OFF = 0x540000
STATS_OFF = 0x700000
CS_OFF = 0x702000
R2_OFF = 0x706000
WS_SMALL_END = 0x708000
HH_OFF = 0x800000
HH_BYTES = S * F * 2


def f2h(x):
    return "0x%08x" % struct.unpack("<I", struct.pack("<f", x))[0]
```

```python
import sys, os
sys.path.insert(0, os.path.dirname(__file__))
from asmgen import kernel_text
import importlib

NAME = "sequential_preLN__ssm_conv_h3__glu_gated_swiglu__prompt"

def build(out, which=("prep", "conv", "gateup", "down"), extra_empty=0, opts=None):
    opts = opts or {}
    import k_prep
    kers = []
    if "prep" in which:
        kers.append(("prep_kernel", k_prep.gen_prep(opts), (256, 256, 0)))
    if "conv" in which:
        import k_conv
        kers.append(("conv_kernel", k_conv.gen_conv(opts), (256, 256, k_conv.LDS)))
    if "gateup" in which:
        import k_gateup
        kers.append(("gateup_kernel", k_gateup.gen_gateup(opts), (224, 768, k_gateup.LDS)))
    if "down" in which:
        import k_down
        kers.append(("down_kernel", k_down.gen_down(opts), (224, 256, k_down.LDS)))
    head = ["; generated by gen/gen.py"]
    for n, _, (g, b, l) in kers:
        head.append(f"; @launch kernel={n} grid=({g},1,1) block=({b},1,1) lds={l}")
    for i in range(extra_empty):
        head.append(f"; @launch kernel=empty_kernel grid=(256,1,1) block=(256,1,1) lds=0")
    txt = "\n".join(head) + '\n.amdgcn_target "amdgcn-amd-amdhsa--gfx950"\n'
    descs = ""
    for n, (body, vg, ag), _ in kers:
        t, d = kernel_text(n, body, vg, ag)
        txt += t
        descs += d
    if extra_empty:
        t, d = kernel_text("empty_kernel", "    s_endpgm", 8, 0)
        txt += t
        descs += d
    open(out, "w").write(txt + descs)

if __name__ == "__main__":
    import asmgen
    if os.environ.get("PROF"):
        asmgen.PROF["on"] = True
    which = sys.argv[2].split(",") if len(sys.argv) > 2 else ("prep", "conv", "gateup", "down")
    opts = dict(kv.split("=") for kv in os.environ.get("OPTS", "").split(",") if kv)
    build(sys.argv[1] if len(sys.argv) > 1 else f"cdna_kernels/{NAME}.s", which, int(os.environ.get("EMPTY", "0")), opts)
```

```python
import re

REG_RE = re.compile(r"\b([vas])(\d+)\b|\b([vas])\[(\d+):(\d+)\]|\b(vcc|exec|m0|vcc_lo|vcc_hi|exec_lo|exec_hi)\b")
TRANS = ("v_exp_f32", "v_log_f32", "v_rcp_f32", "v_rsq_f32", "v_sqrt_f32", "v_sin_f32", "v_cos_f32")
NO_DST_S = ("s_cmp", "s_waitcnt", "s_barrier", "s_branch", "s_cbranch", "s_nop", "s_endpgm", "s_setprio",
            "s_sleep", "s_bitcmp", "s_setreg", "s_sendmsg")


def regs_of(tok):
    out = set()
    for m in REG_RE.finditer(tok):
        if m.group(1):
            out.add((m.group(1), int(m.group(2))))
        elif m.group(3):
            for i in range(int(m.group(4)), int(m.group(5)) + 1):
                out.add((m.group(3), i))
        else:
            n = m.group(6)
            if n.startswith("vcc"):
                out.add(("s", "vcc"))
            elif n.startswith("exec"):
                out.add(("s", "exec"))
            else:
                out.add(("s", "m0"))
    return out


def split_ops(s):
    ops, depth, cur = [], 0, ""
    for ch in s:
        if ch == "[":
            depth += 1
        if ch == "]":
            depth -= 1
        if ch == "," and depth == 0:
            ops.append(cur.strip())
            cur = ""
        else:
            cur += ch
    if cur.strip():
        ops.append(cur.strip())
    return ops


class Ins:
    def __init__(self, text):
        self.text = text
        t = text.split(";")[0].strip()
        self.label = t.endswith(":")
        self.directive = t.startswith(".")
        parts = t.split(None, 1)
        self.op = parts[0] if parts else ""
        rest = parts[1] if len(parts) > 1 else ""
        ops = split_ops(rest)
        self.mods = ""
        if ops:
            last = ops[-1]
            m = re.match(r"^(\S+(?:\[[^\]]*\])?)\s*(.*)$", last)
            toks = last.split(None, 1)
            ops[-1] = toks[0]
            self.mods = toks[1] if len(toks) > 1 else ""
        self.ops = ops
        op = self.op
        self.mfma = op.startswith("v_mfma")
        self.valu = op.startswith("v_") and not self.mfma
        self.vmem = op.startswith(("buffer_", "global_", "flat_"))
        self.ds = op.startswith("ds_")
        self.salu = op.startswith("s_")
        self.trans = op.startswith(TRANS)
        self.dot = op.startswith("v_dot")
        self.dpp = self.valu and (op.endswith("_dpp") or re.search(r"quad_perm|row_|wave_", self.mods) is not None)
        self.permlane = op.startswith("v_permlane")
        self.readlane = op.startswith(("v_readfirstlane", "v_readlane"))
        self.ldsdma = self.vmem and (re.search(r"\blds\b", self.mods) is not None or "_lds_" in op)
        self.states = 1
        if op == "s_nop":
            self.states = int(ops[0], 0) + 1
        dst, src = set(), set()
        self.srcA = self.srcB = self.srcC = set()
        self.widedata = set()
        R = [regs_of(o) for o in ops]
        if self.mfma:
            dst = R[0]
            self.srcA, self.srcB, self.srcC = R[1], R[2], R[3]
            src = R[1] | R[2] | R[3]
            self.passes = 8 if "32x32x16" in op else 4
            assert "32x32x16_bf16" in op or "16x16x32_bf16" in op, op
        elif self.valu:
            if self.permlane or op.startswith("v_swap"):
                dst = R[0] | R[1]
                src = R[0] | R[1]
            elif op.startswith("v_cmpx"):
                dst = {("s", "exec")} | R[0]
                for r in R[1:]:
                    src |= r
            elif op.startswith("v_nop"):
                pass
            else:
                dst = R[0]
                start = 1
                if re.match(r"v_(add|sub|subrev|addc|subb)_co", op) or op.startswith("v_div_scale"):
                    dst = dst | R[1]
                    start = 2
                for r in R[start:]:
                    src |= r
                if op.startswith(("v_fmac", "v_dot2c", "v_mac", "v_pk_fmac")) or self.dpp or op.startswith("v_writelane"):
                    src |= R[0]
        elif self.vmem:
            if "store" in op or self.ldsdma or "atomic" in op or op.startswith(("buffer_wbl2", "buffer_inv")):
                for r in R:
                    src |= r
                if "store" in op and ("x3" in op or "x4" in op):
                    self.widedata = R[0] if op.startswith("buffer") else R[1]
                if "atomic" in op and "sc0" in self.mods:
                    dst = R[0]
                if self.ldsdma:
                    src.add(("s", "m0"))
            else:
                dst = R[0]
                for r in R[1:]:
                    src |= r
                if "d16" in op:
                    src |= R[0]
        elif self.ds:
            if op.startswith(("ds_write", "ds_add", "ds_max", "ds_min")) and "rtn" not in op:
                for r in R:
                    src |= r
            else:
                dst = R[0]
                for r in R[1:]:
                    src |= r
        elif self.salu:
            if op.startswith(NO_DST_S):
                for r in R:
                    src |= r
            else:
                if R:
                    dst = R[0]
                for r in R[1:]:
                    src |= r
                if "saveexec" in op:
                    dst = dst | {("s", "exec")}
        self.dst, self.src = dst, src
        self.vdst = {r for r in dst if r[0] in "va"}
        self.sdst = {r for r in dst if r[0] == "s"}
        self.vsrc = {r for r in src if r[0] in "va"}
        self.ssrc = {r for r in src if r[0] == "s"}


BIG = {4: 8, 8: 12}
OVL = {4: 6, 8: 10}
WARC = {4: 3, 8: 7}


def need(p, c):
    n = 0
    if p.valu and c.mfma and (p.vdst & c.vsrc):
        n = max(n, 2)
    if p.mfma:
        P = p.passes
        if c.mfma:
            if p.dst & (c.srcA | c.srcB):
                n = max(n, BIG[P])
            if p.dst & c.srcC:
                if p.dst == c.srcC and p.passes == c.passes:
                    pass
                else:
                    n = max(n, OVL[P])
            elif p.dst & c.dst:
                n = max(n, OVL[P])
        elif c.valu:
            if p.dst & (c.vsrc | c.vdst):
                n = max(n, BIG[P])
            if p.srcC & c.vdst:
                n = max(n, WARC[P])
        elif c.vmem or c.ds:
            if p.dst & (c.vsrc | c.vdst):
                n = max(n, BIG[P])
            if p.srcC & c.vdst:
                n = max(n, WARC[P])
    if p.valu and p.sdst:
        if c.vmem and (p.sdst & c.ssrc):
            n = max(n, 5)
        if c.valu and (p.sdst & c.ssrc):
            n = max(n, 4 if c.op.startswith(("v_readlane", "v_writelane", "v_div_fmas")) else 2)
        if ("s", "exec") in p.sdst:
            if c.dpp:
                n = max(n, 5)
            if c.mfma or c.readlane or c.permlane:
                n = max(n, 4)
    if p.valu and p.vdst:
        if (c.dpp or c.permlane) and (p.vdst & c.vsrc):
            n = max(n, 2)
        if c.readlane and (p.vdst & c.vsrc):
            n = max(n, 1)
    if p.trans and c.valu and not c.trans and (p.vdst & c.vsrc):
        n = max(n, 1)
    if p.trans and (c.vmem or c.ds) and (p.vdst & c.vsrc):
        n = max(n, 1)
    if p.salu and ("s", "m0") in p.sdst and c.ldsdma:
        n = max(n, 1)
    if p.widedata and (p.widedata & c.vdst):
        n = max(n, 2)
    if p.dot and (p.vdst & (c.vsrc | c.vdst)):
        if c.op == p.op:
            ab = set()
            for o in c.ops[1:3]:
                ab |= regs_of(o)
            if p.vdst & ab:
                n = max(n, 3)
        else:
            n = max(n, 3)
    return n


class Stream:
    def __init__(self):
        self.ins = []
        self.vm = 0
        self.lg = 0
        self.lg_done = 0

    def drain_lg(self):
        self("s_waitcnt lgkmcnt(0)")
        self.lg_done = self.lg

    def __call__(self, text):
        tok = None
        for line in text.split("\n"):
            line = line.strip()
            if not line or line.startswith(";"):
                continue
            i = Ins(line)
            self.ins.append(i)
            if i.vmem:
                self.vm += 1
                tok = ("vm", self.vm)
            if i.ds:
                self.lg += 1
                tok = ("lg", self.lg)
        return tok

    def wait(self, *toks, vm=None, lg=None):
        for t in toks:
            if t is None:
                continue
            if t[0] == "vm":
                n = self.vm - t[1]
                vm = n if vm is None else min(vm, n)
            else:
                if t[1] <= self.lg_done:
                    continue
                n = self.lg - t[1]
                lg = n if lg is None else min(lg, n)
        parts = []
        if vm is not None:
            assert vm >= 0
            if vm <= 63:
                parts.append(f"vmcnt({vm})")
            else:
                parts.append("vmcnt(63)")
        if lg is not None:
            assert lg >= 0
            parts.append(f"lgkmcnt({min(lg, 15)})")
        if parts:
            self("s_waitcnt " + " ".join(parts))

    def comment(self, s):
        i = Ins("; " + s)
        i.op = ""
        i.states = 0
        i.text = "; " + s
        self.ins.append(i)

    def finish(self):
        out = []
        hist = []
        nn = 0
        for c in self.ins:
            if c.op == "" or c.directive:
                out.append(c.text)
                continue
            if c.label:
                out.append(c.text)
                continue
            req = 0
            dist = 0
            for p in reversed(hist):
                r = need(p, c)
                if r - dist > req:
                    req = r - dist
                dist += p.states
                if dist > 24:
                    break
            while req > 0:
                k = min(req, 8)
                nop = Ins(f"s_nop {k - 1}")
                out.append("    " + nop.text)
                hist.append(nop)
                nn += 1
                req -= k
            out.append("    " + c.text)
            hist.append(c)
            if len(hist) > 40:
                hist = hist[-40:]
        self.nops = nn
        return "\n".join(out)


def kernel_text(name, body, vgpr, agpr=0, sgpr=102):
    acc = (vgpr + 3) // 4 * 4
    total = acc + agpr
    txt = f".text\n.globl {name}\n.p2align 8\n.type {name},@function\n{name}:\n{body}\n"
    desc = f""".section .rodata,"a"
.p2align 6
.amdhsa_kernel {name}
  .amdhsa_next_free_vgpr {total}
  .amdhsa_next_free_sgpr {sgpr}
  .amdhsa_accum_offset {acc}
  .amdhsa_group_segment_fixed_size 0
  .amdhsa_kernarg_size 104
  .amdhsa_user_sgpr_count 2
  .amdhsa_user_sgpr_kernarg_segment_ptr 1
  .amdhsa_system_sgpr_workgroup_id_x 1
.end_amdhsa_kernel
"""
    return txt, desc


PROF = {"on": False}
PROF_OFF = 0x3000000


def prof_begin(k):
    if not PROF["on"]:
        return
    k("s_memrealtime s[84:85]")
    k("s_load_dwordx2 s[72:73], s[0:1], 96")
    k("s_waitcnt lgkmcnt(0)")
    for i in range(1, 8):
        k(f"s_mov_b32 s{84+2*i}, 0")


def prof_stamp(k, i):
    if not PROF["on"]:
        return
    k(f"s_memrealtime s[{84+2*i}:{85+2*i}]")
    k("s_waitcnt lgkmcnt(0)")


def prof_clk(k, i):
    if not PROF["on"]:
        return
    k(f"s_memtime s[{84+2*i}:{85+2*i}]")
    k("s_waitcnt lgkmcnt(0)")


def prof_end(k, kidx, vtmp, drain=True):
    if not PROF["on"]:
        return
    if drain:
        k("s_waitcnt vmcnt(0)")
    k("s_memrealtime s[98:99]")
    k("s_mov_b64 exec, 1")
    k(f"s_add_u32 s76, s72, {PROF_OFF:#x}")
    k("s_addc_u32 s77, s73, 0")
    k("s_mov_b32 s78, 0x1000000")
    k("s_mov_b32 s79, 0x00020000")
    k(f"s_add_u32 s74, s2, {kidx*512}")
    k("s_lshl_b32 s74, s74, 9")
    k(f"v_lshrrev_b32 v{vtmp}, 6, v0")
    k(f"v_lshlrev_b32 v{vtmp}, 5, v{vtmp}")
    k("s_waitcnt lgkmcnt(0)")
    for i in range(8):
        k(f"v_mov_b32 v{vtmp+1}, s{84+2*i}")
        k(f"buffer_store_dword v{vtmp+1}, v{vtmp}, s[76:79], s74 offen offset:{4*i}")


def trace_dump(k, vtmp, n=14, base=56):
    if not PROF["on"]:
        return
    k("s_lshl_b32 s74, s2, 10")
    k("s_add_u32 s74, s74, 0x800000")
    k(f"v_lshlrev_b32 v{vtmp}, 1, v{vtmp}")
    for i in range(n):
        k(f"v_mov_b32 v{vtmp+1}, s{base+i}")
        k(f"buffer_store_dword v{vtmp+1}, v{vtmp}, s[76:79], s74 offen offset:{4*i}")
```

```python
from asmgen import Stream, prof_begin, prof_stamp, prof_end
from layout import *
from k_prep import srd

CSTR = 4160
KC_BYTES = 8 * CSTR
KV_BASE = 2 * KC_BYTES
KV_BYTES = 5120
EX_BASE = KV_BASE + 2 * KV_BYTES
LDS = EX_BASE + 4 * 4096


def gen_colsum(k):
    k("s_sub_u32 s15, s2, 224")
    k("s_lshr_b32 s15, s15, 3")
    k("s_bfe_u32 s16, s2, 0x20001")
    k("s_lshl_b32 s16, s16, 2")
    k("s_add_u32 s15, s15, s16")
    k("s_cmp_ge_u32 s15, 14")
    k("s_cbranch_scc1 L_conv_end")
    k("s_and_b32 s16, s2, 1")
    k("s_mul_i32 s16, s16, 14")
    k("s_add_u32 s15, s15, s16")
    k("s_load_dwordx4 s[4:7], s[0:1], 56")
    k("s_load_dwordx2 s[12:13], s[0:1], 96")
    k("v_and_b32 v1, 7, v0")
    k("v_lshrrev_b32 v2, 3, v0")
    k("v_mul_u32_u24 v3, 3584, v2")
    k("v_lshl_add_u32 v3, v1, 4, v3")
    k("s_lshl_b32 s16, s15, 7")
    k("v_add_u32 v3, s16, v3")
    k("s_mov_b32 s38, 0xffff0000")
    for e in range(16):
        k(f"v_mov_b32 v{8+e}, 0")
    k("s_waitcnt lgkmcnt(0)")
    srd(k, 20, 4, 5, W_BYTES)
    srd(k, 24, 6, 7, W_BYTES)
    srd(k, 32, 12, 13, WS_SMALL_END)
    toks = []
    for j in range(14):
        k(f"s_mov_b32 s17, {j*32*3584}")
        for m in range(2):
            r = 32 + (j * 2 + m) * 4
            toks.append(k(f"buffer_load_dwordx4 v[{r}:{r+3}], v3, s[{20+4*m}:{23+4*m}], s17 offen"))
    for j in range(14):
        for m in range(2):
            r = 32 + (j * 2 + m) * 4
            k.wait(toks[j * 2 + m])
            for w in range(4):
                k(f"v_lshlrev_b32 v{24+2*w}, 16, v{r+w}")
                k(f"v_and_b32 v{25+2*w}, s38, v{r+w}")
            for w in range(4):
                a = 8 + 8 * m + 2 * w
                k(f"v_pk_add_f32 v[{a}:{a+1}], v[{a}:{a+1}], v[{24+2*w}:{25+2*w}]")
    for e in range(8):
        k(f"v_permlane32_swap_b32 v{8+e}, v{16+e}")
    for e in range(8):
        k(f"v_add_f32 v{8+e}, v{8+e}, v{16+e}")
    for e in range(4):
        k(f"v_permlane16_swap_b32 v{8+e}, v{12+e}")
    for e in range(4):
        k(f"v_add_f32 v{8+e}, v{8+e}, v{12+e}")
    for e in range(4):
        k(f"v_add_f32_dpp v{8+e}, v{8+e}, v{8+e} row_ror:8 row_mask:0xf bank_mask:0xf")
    k("v_and_b32 v4, 63, v0")
    k("v_lshrrev_b32 v5, 5, v4")
    k("v_bfe_u32 v6, v4, 4, 1")
    k("v_lshlrev_b32 v7, 5, v1")
    k("v_lshl_add_u32 v7, v6, 4, v7")
    k("v_lshl_add_u32 v24, v5, 8, v7")
    k("v_lshrrev_b32 v25, 6, v0")
    k("v_lshl_add_u32 v25, v25, 9, v24")
    k("ds_write_b128 v25, v[8:11]")
    k("s_waitcnt lgkmcnt(0)")
    k("s_barrier")
    for w in range(4):
        k(f"ds_read_b128 v[{32+4*w}:{35+4*w}], v24 offset:{512*w}")
    k("v_mul_u32_u24 v5, 7168, v5")
    k("v_add_u32 v7, v5, v7")
    k("s_lshl_b32 s16, s15, 8")
    k(f"s_add_u32 s16, s16, {CS_OFF:#x}")
    k("s_waitcnt lgkmcnt(0)")
    for w in range(1, 4):
        for e in range(0, 4, 2):
            k(f"v_pk_add_f32 v[{32+e}:{33+e}], v[{32+e}:{33+e}], v[{32+4*w+e}:{33+4*w+e}]")
    k("v_cmp_gt_u32 vcc, 64, v0")
    k("s_and_saveexec_b64 s[48:49], vcc")
    k("s_cbranch_execz L_conv_end")
    k("buffer_store_dwordx4 v[32:35], v7, s[32:35], s16 offen")
    prof_end(k, 1, 4)
    k("s_endpgm")


def gen_conv(opts):
    k = Stream()
    k("s_cmp_ge_u32 s2, 256")
    k("s_cbranch_scc1 L_conv_end")
    prof_begin(k)
    k("s_cmp_lt_u32 s2, 224")
    k("s_cbranch_scc1 L_conv_main")
    gen_colsum(k)
    k("L_conv_main:")
    k.vm = 0
    k.lg = 0
    k("s_load_dwordx4 s[4:7], s[0:1], 32")
    k("s_load_dwordx2 s[12:13], s[0:1], 96")
    k("v_lshrrev_b32 v2, 6, v0")
    k("v_and_b32 v1, 63, v0")
    k("v_readfirstlane_b32 s16, v2")
    k("s_mov_b32 s14, s2")
    k("s_lshr_b32 s17, s16, 1")
    k("s_and_b32 s18, s16, 1")
    k("s_lshl_b32 s19, s14, 1")
    k("s_add_u32 s19, s19, s17")
    k("s_lshl_b32 s19, s19, 12")
    k("v_and_b32 v3, 15, v1")
    k("v_lshrrev_b32 v4, 4, v1")
    k("s_lshl_b32 s36, s18, 11")
    k("v_lshl_add_u32 v5, v1, 4, s36")
    k("v_subrev_u32 v6, 16, v5")
    k("v_subrev_u32 v7, 480, v5")
    k("v_add_u32 v8, 1024, v7")
    k("v_add_u32 v9, 2048, v7")
    k("v_lshlrev_b32 v10, 4, v3")
    k("v_lshlrev_b32 v11, 2, v4")
    k("v_sub_u32 v10, v10, v11")
    k("v_add_u32 v10, 12, v10")
    k("s_lshl_b32 s37, s18, 10")
    k("v_add_u32 v10, s37, v10")
    k("v_lshlrev_b32 v11, 1, v10")
    k("v_lshlrev_b32 v12, 2, v10")
    k("s_mul_i32 s38, s17, %d" % KV_BYTES)
    k(f"s_add_u32 s38, s38, {KV_BASE}")
    k("s_add_u32 s39, s38, s36")
    k("s_waitcnt lgkmcnt(0)")
    k("s_add_u32 s20, s4, s19")
    k("s_addc_u32 s21, s5, 0")
    k("s_mov_b32 s22, 4096")
    k("s_mov_b32 s23, 0x00020000")
    k("s_add_u32 s24, s12, s19")
    k("s_addc_u32 s25, s13, 0")
    k("s_mov_b32 s26, 4096")
    k("s_mov_b32 s27, 0x00020000")
    k("s_lshl_b32 s40, s14, 2")
    k("s_load_dword s41, s[6:7], s40")
    tD = []
    for j in range(2):
        tD.append(k(f"buffer_load_dwordx4 v[{16+8*j}:{19+8*j}], v5, s[20:23], 0 offen offset:{1024*j}"))
        if j == 0:
            tD.append(k(f"buffer_load_dwordx4 v[{20+8*j}:{23+8*j}], v6, s[20:23], 0 offen"))
        else:
            tD.append(k(f"buffer_load_dwordx4 v[{20+8*j}:{23+8*j}], v5, s[20:23], 0 offen offset:{1024*j-16}"))
    tkv = None
    for j in range(3):
        k(f"s_add_u32 m0, s39, {1024*j}")
        tkv = k(f"buffer_load_dwordx4 v{7+j}, s[24:27], 0 offen lds")
    k(f"s_add_u32 s28, s24, {XT_OFF:#x}")
    k("s_addc_u32 s29, s25, 0")
    k("s_mov_b32 s30, 4096")
    k("s_mov_b32 s31, 0x00020000")
    srd(k, 32, 12, 13, 8192, STATS_OFF)
    for tt in range(4):
        k(f"buffer_load_dwordx2 v[{32+2*tt}:{33+2*tt}], v11, s[28:31], 0 offen offset:{512*tt}")
    for tt in range(4):
        tep = k(f"buffer_load_dwordx4 v[{40+4*tt}:{43+4*tt}], v12, s[32:35], 0 offen offset:{1024*tt}")
    k(f"s_add_u32 s28, s24, {HT_OFF:#x}")
    k("s_addc_u32 s29, s25, 0")
    k("s_mul_i32 s42, s17, %d" % KC_BYTES)
    k("s_add_u32 s43, s42, 4080")
    k("v_sub_u32 v13, s43, v5")
    k("v_subrev_u32 v14, 1024, v13")
    k("v_and_b32 v15, 7, v1")
    k(f"v_mul_u32_u24 v15, {CSTR}, v15")
    k("v_add_u32 v15, s42, v15")
    for r in range(4):
        k(f"v_mov_b32 v{56+r}, 0")
    k("ds_write_b128 v15, v[56:59] offset:4096")
    k("v_and_b32 v60, 7, v3")
    k(f"v_mul_u32_u24 v60, {CSTR}, v60")
    k("v_lshrrev_b32 v61, 3, v3")
    k("v_add_u32 v61, v61, v4")
    k("v_lshl_add_u32 v60, v61, 4, v60")
    k("s_lshl_b32 s44, s18, 6")
    k("s_sub_u32 s45, s42, s44")
    k(f"s_add_u32 s45, s45, {4032 - 128*31}")
    k("v_add_u32 v60, s45, v60")
    k("v_lshlrev_b32 v61, 5, v3")
    k("v_lshl_add_u32 v61, v4, 4, v61")
    k("s_sub_u32 s46, s38, s44")
    k(f"s_add_u32 s46, s46, {448 - 384}")
    k("v_add_u32 v61, s46, v61")
    k("s_add_u32 s47, s38, 480")
    k("v_add_u32 v62, s47, v11")
    k("s_lshl_b32 s48, s16, 12")
    k(f"s_add_u32 s48, s48, {EX_BASE}")
    k("v_lshl_add_u32 v63, v1, 4, s48")
    k("v_xor_b32 v64, 4096, v63")
    assert EX_BASE % 8192 == 0 or True
    k("s_mov_b32 s49, 0xffff")
    EA, EB, OA, OB = 68, 77, 84, 93
    for j in range(2):
        Dn = [16 + 8 * j + 3, 16 + 8 * j + 2, 16 + 8 * j + 1, 16 + 8 * j + 0,
              20 + 8 * j + 3, 20 + 8 * j + 2, 20 + 8 * j + 1, 20 + 8 * j + 0]
        k.wait(tD[2 * j + 1])
        if j == 0:
            prof_stamp(k, 1)
        for w in range(6):
            k(f"v_alignbit_b32 v{EA+w}, v{Dn[w]}, v{Dn[w]}, 16")
        for w in range(6):
            k(f"v_bfi_b32 v{OA+w}, s49, v{Dn[w]}, v{Dn[w+1]}")
        for w in range(1, 7):
            k(f"v_alignbit_b32 v{EB+w}, v{Dn[w]}, v{Dn[w]}, 16")
        for w in range(1, 7):
            k(f"v_bfi_b32 v{OB+w}, s49, v{Dn[w]}, v{Dn[w+1]}")
        ad = 13 + j
        for a in range(4):
            if a % 2 == 0:
                e, o = EA + a, OA + a
            else:
                e, o = EB + a, OB + a
            assert e % 2 == 0 and o % 2 == 0
            k(f"ds_write_b128 v{ad}, v[{e}:{e+3}] offset:{(2*a)*CSTR}")
            k(f"ds_write_b128 v{ad}, v[{o}:{o+3}] offset:{(2*a+1)*CSTR}")
        if j == 0:
            k("s_waitcnt lgkmcnt(0)")
    k.wait(tkv)
    k("s_waitcnt lgkmcnt(0)")
    prof_stamp(k, 2)
    k("s_barrier")
    prof_stamp(k, 3)
    ACC = 100
    AR = 132
    NA = 6
    k.lg = 0
    btok = {}
    atok = {}

    def loadA(a):
        r = AR + 4 * (a % NA)
        atok[a] = k(f"ds_read_b128 v[{r}:{r+3}], v60 offset:{128*(31-a)}")

    def loadB(c):
        btok[c] = k(f"ds_read_b128 a[{4*(c+3)}:{4*(c+3)+3}], v61 offset:{128*(c+3)}")

    work = []
    for a in range(32):
        for t in range(7, a // 4 - 1, -1):
            work.append((a, t))
    needs = []
    seenA, seenB = set(), set()
    for (a, t) in work:
        n = []
        if a not in seenA:
            seenA.add(a)
            n.append(("A", a))
        c = 4 * t - a
        if c not in seenB:
            seenB.add(c)
            n.append(("B", c))
        needs.append(n)
    flat = [(i, x) for i, n in enumerate(needs) for x in n]
    LOOK = 10
    issued = 0
    first = set()
    lastA_use = {}
    for i, (a, t) in enumerate(work):
        lastA_use[a] = i
    for i, (a, t) in enumerate(work):
        while issued < len(flat):
            idx, (kind, v) = flat[issued]
            pend = sum(1 for q in range(issued) if flat[q][0] > i)
            if idx > i and pend >= LOOK:
                break
            if kind == "A" and v >= NA and lastA_use[v - NA] >= i:
                break
            (loadA if kind == "A" else loadB)(v)
            issued += 1
        c = 4 * t - a
        toks = []
        if needs[i]:
            toks = [atok[a], btok[c]]
            k.wait(*toks)
        r = AR + 4 * (a % NA)
        acc = ACC + 4 * t
        cc = "0" if t not in first else f"v[{acc}:{acc+3}]"
        first.add(t)
        k(f"v_mfma_f32_16x16x32_bf16 v[{acc}:{acc+3}], v[{r}:{r+3}], a[{4*(c+3)}:{4*(c+3)+3}], {cc}")
    prof_stamp(k, 4)
    k("s_cmp_eq_u32 s18, 0")
    k("s_cbranch_scc1 L_conv_noswap")
    for r in range(16):
        k(f"v_swap_b32 v{ACC+r}, v{ACC+16+r}")
    k("L_conv_noswap:")
    k("s_nop 7")
    for tt in range(4):
        r = ACC + 16 + 4 * tt
        k(f"ds_write_b128 v63, v[{r}:{r+3}] offset:{1024*tt}")
    kvt = []
    for tt in range(4):
        kvt.append(k(f"ds_read_b64 v[{68+2*tt}:{69+2*tt}], v62 offset:{512*tt}"))
    k("s_lshl_b32 s50, s41, 16")
    k("s_and_b32 s51, s41, 0xffff0000")
    k("s_cmp_eq_u32 s17, 0")
    k("s_cselect_b32 s50, s50, s51")
    k("s_mov_b32 s51, 0xffff0000")
    k("s_waitcnt lgkmcnt(0)")
    k("s_barrier")
    for tt in range(4):
        r = 132 + 4 * tt
        k(f"ds_read_b128 v[{r}:{r+3}], v64 offset:{1024*tt}")
    k.wait(tep)
    for tt in range(4):
        for e in range(4):
            xs = 32 + 2 * tt + e // 2
            xf = 148 + 4 * tt + e
            q = 164 + 4 * tt + e
            st = 40 + 4 * tt + e
            if e % 2 == 0:
                k(f"v_lshlrev_b32 v{xf}, 16, v{xs}")
            else:
                k(f"v_and_b32 v{xf}, s51, v{xs}")
            k(f"v_lshlrev_b32 v{q}, 16, v{st}")
            k(f"v_and_b32 v{st}, s51, v{st}")
            k(f"v_rcp_f32 v{st}, v{st}")
            k(f"v_sub_f32 v{q}, v{xf}, v{q}")
            k(f"v_mul_f32 v{q}, v{q}, v{st}")
    k("s_waitcnt lgkmcnt(0)")
    for tt in range(4):
        for e in range(4):
            acc = ACC + 4 * tt + 3 - e
            oth = 132 + 4 * tt + 3 - e
            ks = 68 + 2 * tt + e // 2
            kf = 40 + 4 * tt + e
            if e % 2 == 0:
                k(f"v_lshlrev_b32 v{kf}, 16, v{ks}")
            else:
                k(f"v_and_b32 v{kf}, s51, v{ks}")
            k(f"v_add_f32 v{acc}, v{acc}, v{oth}")
            k(f"v_fmac_f32 v{acc}, s50, v{kf}")
            xf = 148 + 4 * tt + e
            q = 164 + 4 * tt + e
            k(f"v_fmac_f32 v{xf}, v{q}, v{acc}")
        o = 32 + 2 * tt
        xf = 148 + 4 * tt
        k(f"v_cvt_pk_bf16_f32 v{o}, v{xf}, v{xf+1}")
        k(f"v_cvt_pk_bf16_f32 v{o+1}, v{xf+2}, v{xf+3}")
        k(f"buffer_store_dwordx2 v[{o}:{o+1}], v11, s[28:31], 0 offen offset:{512*tt}")
    prof_stamp(k, 5)
    prof_end(k, 1, 4)
    k("L_conv_end:")
    k("s_endpgm")
    return k.finish(), 180, 128
```

```python
from asmgen import Stream, prof_begin, prof_stamp, prof_end, prof_clk
from layout import *
from k_prep import srd

NSL = 8
WREG = NSL * 4096 + 2048
LDS = 4 * WREG
NB = 14


def map_wg(k, mode):
    k("s_and_b32 s16, s2, 7")
    k("s_lshr_b32 s17, s2, 3")
    if mode == "4x7":
        k("s_mul_i32 s18, s17, 37")
        k("s_lshr_b32 s18, s18, 8")
        k("s_lshl_b32 s14, s16, 2")
        k("s_add_u32 s14, s14, s18")
        k("s_mul_i32 s18, s18, 7")
        k("s_sub_u32 s15, s17, s18")
    elif mode == "plain":
        k("s_and_b32 s14, s2, 31")
        k("s_lshr_b32 s15, s2, 5")
    else:
        raise ValueError(mode)


HV, WV, TA = 4, 8, 12
IDN = 18
HF = 24
AF = 32
ACC = 64
BR = 128


def gen_down(opts):
    DEPTH = int(opts.get("dn_depth", 6))
    P = int(opts.get("dn_p", 12))
    k = Stream()
    k("s_cmp_ge_u32 s2, 224")
    k("s_cbranch_scc1 L_dn_end")
    prof_begin(k)
    k("s_load_dwordx4 s[4:7], s[0:1], 72")
    k("s_load_dwordx2 s[12:13], s[0:1], 96")
    k("v_lshrrev_b32 v2, 6, v0")
    k("v_and_b32 v1, 63, v0")
    k("v_readfirstlane_b32 s19, v2")
    map_wg(k, opts.get("dn_map", "4x7"))
    k("v_lshrrev_b32 v2, 3, v1")
    k("v_and_b32 v3, 7, v1")
    k("v_and_b32 v16, 6, v2")
    k("v_xor_b32 v3, v3, v16")
    k("s_mul_i32 s36, s19, %d" % (32 * 896))
    k(f"v_mul_u32_u24 v{WV}, 896, v2")
    k(f"v_lshl_add_u32 v{WV}, v3, 4, v{WV}")
    k(f"v_add_u32 v{WV}, s36, v{WV}")
    for q in range(1, 4):
        k(f"v_add_u32 v{WV+q}, {q*(7168-1024)}, v{WV}")
    k("s_lshl_b32 s37, s19, 10")
    k("v_lshl_add_u32 v2, v1, 4, s37")
    for j in range(4):
        k(f"s_add_u32 s38, s19, {j}")
        k("s_and_b32 s38, s38, 3")
        k(f"s_mul_i32 s38, s38, {56*1024}")
        k(f"v_add_u32 v{HV+j}, s38, v2")
    k("s_mul_i32 s44, s19, %d" % WREG)
    k("s_lshl_b32 s38, s15, 7")
    k(f"s_mul_i32 s39, s14, {4*56*1024}")
    k(f"s_add_u32 s39, s39, {HH_OFF:#x}")
    k(f"s_mov_b32 s22, {4*56*1024:#x}")
    k("s_mov_b32 s23, 0x00020000")
    k(f"s_sub_u32 s26, {W_BYTES:#x}, s38")
    k("s_mov_b32 s27, 0x00020000")
    k("s_waitcnt lgkmcnt(0)")
    k("s_add_u32 s20, s12, s39")
    k("s_addc_u32 s21, s13, 0")
    k("s_add_u32 s24, s4, s38")
    k("s_addc_u32 s25, s5, 0")
    tw, th = {}, {}

    def loads(i):
        out = []
        for q in range(4):
            def f(q=q):
                if q == 0:
                    k(f"s_mov_b32 s41, {i*128*896:#x}")
                    k(f"s_add_u32 m0, s44, {(i % NSL)*4096:#x}")
                tw[i] = k(f"buffer_load_dwordx4 v{WV+q}, s[24:27], s41 offen offset:{q*1024} lds")
            out.append(f)
        for j in range(4):
            def f(j=j):
                if j == 0:
                    k(f"s_mov_b32 s42, {i*4096:#x}")
                r = BR + 16 * (i % 8) + 4 * j
                th[(i, j)] = k(f"buffer_load_dwordx4 v[{r}:{r+3}], v{HV+j}, s[20:23], s42 offen")
            out.append(f)
        return out

    for f in loads(0):
        f()
    k("v_lshrrev_b32 v2, 1, v1")
    k("v_and_b32 v3, 1, v1")
    k("v_lshlrev_b32 v16, 12, v2")
    k("v_lshl_add_u32 v16, v3, 4, v16")
    k(f"v_add_u32 v17, {32*4096 - 1024}, v16")
    k("s_lshl_b32 s40, s15, 18")
    k("s_lshl_b32 s41, s14, 7")
    k("s_add_u32 s40, s40, s41")
    k("s_lshl_b32 s41, s19, 5")
    k("s_add_u32 s40, s40, s41")
    k(f"s_add_u32 s41, s40, {HT_OFF:#x}")
    k("s_add_u32 s28, s12, s41")
    k("s_addc_u32 s29, s13, 0")
    k(f"s_sub_u32 s30, {SD_BYTES:#x}, s40")
    k("s_mov_b32 s31, 0x00020000")
    k(f"s_add_u32 m0, s44, {NSL*4096:#x}")
    k("buffer_load_dwordx4 v16, s[28:31], 0 offen lds")
    thi = k("buffer_load_dwordx4 v17, s[28:31], 0 offen offset:1024 lds")
    for i in range(1, DEPTH):
        for f in loads(i):
            f()
    k("v_lshrrev_b32 v2, 2, v1")
    k(f"v_lshl_add_u32 v{TA}, v2, 7, s44")
    k("v_bfe_u32 v3, v1, 3, 2")
    k(f"v_lshl_add_u32 v{TA}, v3, 5, v{TA}")
    k("v_and_b32 v3, 3, v1")
    k(f"v_lshl_add_u32 v{TA}, v3, 3, v{TA}")
    for T in range(1, 4):
        k(f"v_xor_b32 v{TA+T}, {32*T}, v{TA}")
    k(f"s_add_u32 s45, s44, {NSL*4096:#x}")
    k("v_lshl_add_u32 v16, v1, 3, s45")
    for r in (0, 1, 4, 5):
        k(f"v_mov_b32 v{IDN+r}, 0")
    k("v_bfe_u32 v2, v1, 2, 2")
    k("v_lshrrev_b32 v3, 4, v1")
    k("v_cmp_eq_u32 vcc, v2, v3")
    k("v_and_b32 v2, 1, v1")
    k("v_lshlrev_b32 v2, 4, v2")
    k("v_mov_b32 v3, 0x3f80")
    k("v_lshlrev_b32 v2, v2, v3")
    k("v_cndmask_b32 v2, 0, v2, vcc")
    k("v_and_b32 v3, 2, v1")
    k("v_cmp_eq_u32 vcc, 0, v3")
    k(f"v_cndmask_b32 v{IDN+2}, 0, v2, vcc")
    k(f"v_cndmask_b32 v{IDN+3}, v2, 0, vcc")
    k("s_lshl_b32 s38, s14, 6")
    k("s_lshl_b32 s39, s19, 4")
    k("s_add_u32 s38, s38, s39")
    k("v_and_b32 v2, 15, v1")
    k("v_add_u32 v2, s38, v2")
    k("v_mul_u32_u24 v17, 896, v2")
    k("v_bfe_u32 v2, v1, 4, 1")
    k("v_lshl_add_u32 v17, v2, 5, v17")
    k("v_lshrrev_b32 v2, 5, v1")
    k("v_lshl_add_u32 v17, v2, 4, v17")
    k("s_lshl_b32 s38, s15, 7")
    k("v_add_u32 v17, s38, v17")
    srd(k, 28 + 4, 6, 7, SD_BYTES)
    k("v_lshl_add_u32 v2, v1, 4, s44")
    for j in range(1, 4):
        k(f"s_sub_u32 s38, s19, {j}")
        k("s_and_b32 s38, s38, 3")
        k(f"s_mul_i32 s{45+j}, s38, {WREG}")

    ta = {}

    def areads(i):
        k.wait(tw[i])
        fb = AF + 16 * (i % 2)
        for T in range(4):
            for rho in range(2):
                r = fb + 4 * T + 2 * rho
                ta[(i, T)] = k(f"ds_read_b64_tr_b16 v[{r}:{r+1}], v{TA+T} offset:{(i % NSL)*4096 + rho*2048}")

    areads(0)
    prof_stamp(k, 1)
    prof_clk(k, 5)
    k.wait(thi)
    hr = []
    for kb in range(2):
        for rho in range(2):
            r = HF + 4 * kb + 2 * rho
            hr.append(k(f"ds_read_b64_tr_b16 v[{r}:{r+1}], v16 offset:{kb*1024 + rho*512}"))
    for i in range(NB):
        ld = loads(i + DEPTH) if i + DEPTH < NB else []
        fb = AF + 16 * (i % 2)
        order = [1, 2, 3, 0] if i == 0 else [0, 1, 2, 3]
        for n in range(16):
            j, T = order[n // 4], n % 4
            if (n // 4) % 2:
                T = 3 - T
            if n == P and i + 1 < NB:
                areads(i + 1)
            need = []
            if n < 4:
                need.append(ta[(i, T)])
            if n % 4 == 0:
                need.append(th[(i, j)])
            if i == 0 and n == 12:
                k.wait(hr[-1])
                for T2 in range(4):
                    a = ACC + 4 * T2
                    idn = IDN + 2 - 2 * (T2 % 2)
                    k(f"v_mfma_f32_16x16x32_bf16 v[{a}:{a+3}], v[{idn}:{idn+3}], v[{HF+4*(T2//2)}:{HF+4*(T2//2)+3}], 0")
            k.wait(*need)
            acc = ACC + 16 * j + 4 * T
            b = BR + 16 * (i % 8) + 4 * j
            c = "0" if (i == 0 and j != 0) else f"v[{acc}:{acc+3}]"
            k(f"v_mfma_f32_16x16x32_bf16 v[{acc}:{acc+3}], v[{fb+4*T}:{fb+4*T+3}], v[{b}:{b+3}], {c}")
            if ld and n < 8:
                ld[n]()
    prof_stamp(k, 2)
    prof_clk(k, 6)
    for j in (1, 2, 3):
        for T in range(4):
            a = ACC + 16 * j + 4 * T
            k(f"ds_write_b128 v2, v[{a}:{a+3}] offset:{(j-1)*4096 + T*1024}")
    k("v_lshlrev_b32 v3, 4, v1")
    for j in (1, 2, 3):
        k(f"v_add_u32 v{HV+j}, s{45+j}, v3")
    k("s_waitcnt lgkmcnt(0)")
    k("s_barrier")
    tr = {}
    for T in range(4):
        for j in (1, 2, 3):
            r = BR + 16 * j + 4 * T
            tr[(j, T)] = k(f"ds_read_b128 v[{r}:{r+3}], v{HV+j} offset:{(j-1)*4096 + T*1024}")
    for T in range(4):
        a = ACC + 4 * T
        for j in (1, 2, 3):
            k.wait(tr[(j, T)])
            r = BR + 16 * j + 4 * T
            for h in range(2):
                k(f"v_pk_add_f32 v[{a+2*h}:{a+2*h+1}], v[{a+2*h}:{a+2*h+1}], v[{r+2*h}:{r+2*h+1}]")
        o = AF + 2 * T
        k(f"v_cvt_pk_bf16_f32 v{o}, v{a}, v{a+1}")
        k(f"v_cvt_pk_bf16_f32 v{o+1}, v{a+2}, v{a+3}")
        if T % 2:
            o = AF + 2 * (T - 1)
            k(f"v_permlane16_swap_b32 v{o}, v{o+2}")
            k(f"v_permlane16_swap_b32 v{o+1}, v{o+3}")
            k(f"buffer_store_dwordx4 v[{o}:{o+3}], v17, s[32:35], 0 offen offset:{64*(T//2)}")
    prof_stamp(k, 3)
    prof_end(k, 3, 4)
    k("L_dn_end:")
    k("s_endpgm")
    return k.finish(), 256, 0
```

```python
from asmgen import Stream, prof_clk, prof_begin, prof_stamp, prof_end
from layout import *
from k_prep import srd

SLOT = 24576
NSLOT = 6
ST_BASE = SLOT * NSLOT
LDS = ST_BASE + 2048
NST = 14
LOG2E = 1.4426950408889634


def map_wg(k, mode):
    k("s_and_b32 s16, s2, 7")
    k("s_lshr_b32 s17, s2, 3")
    if mode == "rows":
        k("s_cmp_ge_u32 s17, 14")
        k("s_cselect_b32 s18, 1, 0")
        k("s_lshl_b32 s14, s16, 1")
        k("s_add_u32 s14, s14, s18")
        k("s_mul_i32 s18, s18, 14")
        k("s_sub_u32 s15, s17, s18")
    elif mode == "4x7":
        k("s_mul_i32 s18, s17, 37")
        k("s_lshr_b32 s18, s18, 8")
        k("s_lshr_b32 s14, s16, 1")
        k("s_lshl_b32 s14, s14, 2")
        k("s_add_u32 s14, s14, s18")
        k("s_mul_i32 s18, s18, 7")
        k("s_sub_u32 s15, s17, s18")
        k("s_and_b32 s18, s16, 1")
        k("s_mul_i32 s18, s18, 7")
        k("s_add_u32 s15, s15, s18")
    elif mode == "plain":
        k("s_and_b32 s14, s2, 15")
        k("s_lshr_b32 s15, s2, 4")
    else:
        raise ValueError(mode)


def tr_base(k, vdst, vlane, vt0):
    k(f"v_lshrrev_b32 v{vt0}, 2, v{vlane}")
    k(f"v_lshlrev_b32 v{vdst}, 8, v{vt0}")
    k(f"v_and_b32 v{vt0}, 7, v{vt0}")
    k(f"v_lshl_add_u32 v{vdst}, v{vt0}, 5, v{vdst}")
    k(f"v_and_b32 v{vt0}, 3, v{vlane}")
    k(f"v_lshl_add_u32 v{vdst}, v{vt0}, 3, v{vdst}")


def gen_loader(k, opts):
    k.vm = 0
    k.lg = 0
    INIT = int(opts.get("gu_init", 2))
    k("s_sub_u32 s19, s19, 8")
    k("v_lshrrev_b32 v2, 4, v1")
    k("s_lshl_b32 s36, s19, 2")
    k("v_add_u32 v2, s36, v2")
    k("v_and_b32 v3, 15, v1")
    k("v_and_b32 v4, 7, v2")
    k("v_lshlrev_b32 v4, 1, v4")
    k("v_xor_b32 v3, v3, v4")
    k("v_lshlrev_b32 v4, 12, v2")
    k("v_lshl_add_u32 v4, v3, 4, v4")
    k("v_add_u32 v5, 0x10000, v4")
    k("v_mul_u32_u24 v6, 3584, v2")
    k("v_lshl_add_u32 v6, v3, 4, v6")
    k(f"v_add_u32 v7, {16*3584}, v6")
    k("s_lshl_b32 s37, s19, 10")
    k("s_lshl_b32 s38, s14, 8")
    k("s_lshl_b32 s39, s15, 8")
    k(f"s_add_u32 s40, s38, {HT_OFF:#x}")
    k(f"s_sub_u32 s22, {SD_BYTES:#x}, s38")
    k("s_mov_b32 s23, 0x00020000")
    k(f"s_sub_u32 s26, {W_BYTES:#x}, s39")
    k("s_mov_b32 s27, 0x00020000")
    k("s_mov_b32 s30, s26")
    k("s_mov_b32 s31, 0x00020000")
    k("s_waitcnt lgkmcnt(0)")
    k("s_add_u32 s20, s12, s40")
    k("s_addc_u32 s21, s13, 0")
    k("s_add_u32 s24, s4, s39")
    k("s_addc_u32 s25, s5, 0")
    k("s_add_u32 s28, s6, s39")
    k("s_addc_u32 s29, s7, 0")
    last = {}

    def issue(j):
        slot = j % NSLOT
        k(f"s_mov_b32 s41, {j*32*4096:#x}")
        k(f"s_mov_b32 s42, {j*32*3584:#x}")
        for i in range(2):
            for img, (vr, sr, so) in enumerate(((4, 20, 41), (6, 24, 42), (6, 28, 42))):
                if opts.get("gu_nodma") and j >= NSLOT:
                    last[j] = None
                    continue
                k(f"s_add_u32 m0, s37, {slot*SLOT + img*8192 + i*4096:#x}")
                last[j] = k(f"buffer_load_dwordx4 v{vr+i}, s[{sr}:{sr+3}], s{so} offen lds")

    nxt = 0
    for j in range(INIT):
        issue(j)
        nxt += 1
    k("s_mul_i32 s47, s17, 448")
    k("s_mul_i32 s48, s19, 112")
    k("s_add_u32 s47, s47, s48")
    k("v_add_u32 v40, s47, v1")
    k("v_lshlrev_b32 v40, 7, v40")
    srd(k, 32, 8, 9, W_BYTES)
    for j in range(NST):
        k.wait(last[j])
        if j == 0:
            prof_stamp(k, 1)
        k("s_barrier")
        lim = min(NST - 1, j + 4 if j >= 2 else NSLOT - 1)
        n = 0
        while nxt <= lim and n < 2:
            issue(nxt)
            nxt += 1
            n += 1
        if j == int(opts.get("gu_pfj", 10)) and not opts.get("nopf"):
            k("buffer_load_dword v41, v40, s[32:35], 0 offen")
            k(f"v_add_u32 v40, {48*128}, v40")
            k("buffer_load_dword v42, v40, s[32:35], 0 offen")
    prof_stamp(k, 2)
    k("s_barrier")
    k("s_waitcnt vmcnt(0)")
    prof_end(k, 2, 4)
    k("s_endpgm")


FR = 32
ACC = 96
CS = 16


def gen_mfma(k, opts):
    k.vm = 0
    k.lg = 0
    k("s_and_b32 s36, s19, 3")
    k("s_lshr_b32 s37, s19, 2")
    tr_base(k, 10, 1, 11)
    k("s_lshl_b32 s38, s36, 6")
    k("v_xor_b32 v4, s38, v10")
    k("v_xor_b32 v5, 32, v4")
    k("s_lshl_b32 s38, s37, 2")
    for b in range(4):
        k(f"s_add_u32 s39, s36, {b}")
        k("s_and_b32 s39, s39, 3")
        k(f"s_add_u32 s{50+b}, s38, s39")
        k(f"s_lshl_b32 s39, s{50+b}, 5")
        k(f"v_xor_b32 v{6+b}, s39, v10")
    k("v_lshrrev_b32 v10, 4, v1")
    k("v_lshlrev_b32 v10, 4, v10")
    k("s_lshl_b32 s38, s15, 9")
    k("s_lshl_b32 s39, s36, 7")
    k("s_add_u32 s38, s38, s39")
    k("s_add_u32 s39, s38, 7168")
    k("v_and_b32 v11, 15, v1")
    k("v_lshlrev_b32 v11, 4, v11")
    k(f"v_add_u32 v11, {ST_BASE}, v11")
    k("s_lshl_b32 s44, s14, 3")
    k("s_lshl_b32 s45, s15, 2")
    k("s_add_u32 s45, s45, s36")
    for sj in range(4):
        k(f"s_add_u32 s{40+sj}, s44, s{50+sj}")
        k(f"s_mul_i32 s{40+sj}, s{40+sj}, 56")
        k(f"s_add_u32 s{40+sj}, s{40+sj}, s45")
        k(f"s_lshl_b32 s{40+sj}, s{40+sj}, 10")
        k(f"s_lshl_b32 s{50+sj}, s{50+sj}, 8")
    k("v_lshlrev_b32 v3, 4, v1")
    k("v_mov_b32 v12, 0")
    k("v_mov_b32 v13, 0")
    k("s_mov_b32 s45, 0xffff0000")
    k("s_waitcnt lgkmcnt(0)")
    srd(k, 24, 12, 13, 14336, CS_OFF)
    srd(k, 20, 12, 13, HH_BYTES, HH_OFF)
    tcs = None
    for a in range(4):
        tcs = k(f"buffer_load_dwordx4 v[{CS+4*a}:{CS+4*a+3}], v10, s[24:27], s{38 + a//2} offen offset:{64*(a%2)}")

    tok = {}
    cur = [0]

    def reads(j):
        slot = j % NSLOT
        base = (slot % 2) * SLOT
        fb = FR + 32 * (j % 2)
        out = []
        if slot // 2 != cur[0]:
            d = (slot // 2 - cur[0]) * 2 * SLOT
            cur[0] = slot // 2

            def fa():
                for r in range(4, 10):
                    k(f"v_add_u32 v{r}, {d & 0xffffffff:#x}, v{r}")
        else:
            fa = None
        order = [("A", 0), ("B", 0), ("A", 1), ("A", 2), ("A", 3), ("B", 1), ("B", 2), ("B", 3)]
        for kind, x in order:
            for rho in range(2):
                def f(kind=kind, x=x, rho=rho):
                    if kind == "A":
                        r, ar, img = fb + 4 * x, 4 + x % 2, 8192 * (1 + x // 2)
                    else:
                        r, ar, img = fb + 16 + 4 * x, 6 + x, 0
                    r += 2 * rho
                    if (opts.get("gu_nomfma") or opts.get("gu_nords")) and 0 < j < NST - 1:
                        tok[(j, kind, x)] = None
                        return
                    tok[(j, kind, x)] = k(f"ds_read_b64_tr_b16 v[{r}:{r+1}], v{ar} offset:{base + img + rho*4096}")
                out.append(f)
        return fa, out

    def mfma(j, i):
        sj, a = i // 4, i % 4
        if sj % 2:
            a = 3 - a
        fb = FR + 32 * (j % 2)
        need = []
        if sj == 0:
            need.append(tok[(j, "A", a)])
        if i % 4 == 0:
            need.append(tok[(j, "B", sj)])
        k.wait(*need)
        if opts.get("gu_nomfma") and 0 < j < NST - 1:
            return
        acc = ACC + 16 * sj + 4 * a
        c = "0" if j == 0 else f"v[{acc}:{acc+3}]"
        k(f"v_mfma_f32_16x16x32_bf16 v[{acc}:{acc+3}], v[{fb+4*a}:{fb+4*a+3}], v[{fb+16+4*sj}:{fb+16+4*sj+3}], {c}")

    def statops(j):
        b0 = FR + 32 * (j % 2) + 16
        out = []
        if opts.get("gu_nostats"):
            return out
        for q in range(4):
            out += [f"v_lshlrev_b32 v14, 16, v{b0+q}", f"v_and_b32 v15, s45, v{b0+q}",
                    "v_add_f32 v12, v12, v14", "v_fmac_f32 v13, v14, v14",
                    "v_add_f32 v12, v12, v15", "v_fmac_f32 v13, v15, v15"]
        return out

    STR = FR + 32 * (NST % 2)

    def finops():
        o = STR
        out = []
        for sw in ("v_permlane16_swap_b32", "v_permlane32_swap_b32"):
            out += ["v_mov_b32 v14, v12", "v_mov_b32 v15, v13", f"{sw} v12, v14", f"{sw} v13, v15",
                    "v_add_f32 v12, v12, v14", "v_add_f32 v13, v13, v15"]
        out += [f"v_mul_f32 v12, {f2h(1.0/448.0)}, v12",
                f"v_mul_f32 v13, {f2h(1.0/448.0)}, v13",
                "v_fma_f32 v13, -v12, v12, v13",
                "v_max_f32 v13, 0, v13",
                "v_cvt_pk_bf16_f32 v14, v13, v13",
                f"v_cvt_pk_bf16_f32 v{o}, -v12, -v12",
                "v_lshlrev_b32 v14, 16, v14",
                f"v_lshlrev_b32 v{o}, 16, v{o}",
                f"v_add_f32 v14, {f2h(1e-5)}, v14",
                "v_cvt_pk_bf16_f32 v14, v14, v14",
                "v_lshlrev_b32 v14, 16, v14",
                "v_sqrt_f32 v14, v14",
                "v_add_u32 v4, s50, v11",
                "v_cvt_pk_bf16_f32 v14, v14, v14",
                "v_lshlrev_b32 v14, 16, v14",
                f"v_rcp_f32 v{o+1}, v14",
                f"v_mul_f32 v{o+2}, v14, v14",
                f"v_mul_f32 v{o+1}, {f2h(-LOG2E)}, v{o+1}",
                f"ds_write_b96 v4, v[{o}:{o+2}]",
                "v_add_u32 v5, s51, v11", "v_add_u32 v6, s52, v11", "v_add_u32 v7, s53, v11"]
        return out

    k("s_barrier")
    prof_stamp(k, 1)
    prof_clk(k, 5)
    fa, rd = reads(0)
    for f in rd:
        f()
    for j in range(NST):
        st = statops(j)
        if j + 1 < NST:
            fa, rd = reads(j + 1)
            mfma(j, 0)
            if fa:
                fa()
            mfma(j, 1)
            k("s_barrier")
            q = 0
            for i in range(2, 16):
                n = 2 if i < 4 else 1
                for _ in range(n):
                    rd[q]()
                    q += 1
                mfma(j, i)
                if i >= 4:
                    for _ in range(2):
                        if st:
                            k(st.pop(0))
            assert q == 16 and not st
        else:
            prof_stamp(k, 2)
            prof_clk(k, 6)
            st += finops()
            per = int(opts.get("gu_fin", 6))
            ts = None
            for i in range(16):
                mfma(j, i)
                if st:
                    for _ in range(per):
                        if st:
                            k(st.pop(0))
                    if not st:
                        k("s_waitcnt lgkmcnt(0)")
                        k("s_barrier")
                        for sj in range(1, 4):
                            ts = k(f"ds_read_b96 v[{STR+4*sj}:{STR+4*sj+2}], v{4+sj}")
            assert ts is not None
            k.wait(tcs)
    prof_stamp(k, 3)
    T = STR + 16
    O = FR + 32 * ((NST + 1) % 2)

    def pr(r):
        return f"v[{r}:{r+1}]"
    for sj in range(4):
        if sj == 1:
            k.wait(ts)
        G = ACC + 16 * sj
        U = G + 8
        m, i2 = pr(STR + 4 * sj), pr(STR + 4 * sj + 2)
        for r in range(0, 8, 2):
            k(f"v_pk_fma_f32 {pr(G+r)}, {m}, {pr(CS+r)}, {pr(G+r)} op_sel_hi:[0,1,1]")
        for r in range(0, 8, 2):
            k(f"v_pk_mul_f32 {pr(T+r)}, {m}, {pr(G+r)} op_sel:[1,0]")
            k(f"v_pk_fma_f32 {pr(U+r)}, {m}, {pr(CS+8+r)}, {pr(U+r)} op_sel_hi:[0,1,1]")
        for r in range(8):
            k(f"v_exp_f32 v{T+r}, v{T+r}")
            if r % 2:
                k(f"v_pk_mul_f32 {pr(G+r-1)}, {pr(G+r-1)}, {pr(U+r-1)}")
        for r in range(0, 8, 2):
            k(f"v_pk_fma_f32 {pr(T+r)}, {pr(T+r)}, {i2}, {i2} op_sel_hi:[1,0,0]")
        for r in range(8):
            k(f"v_rcp_f32 v{T+r}, v{T+r}")
        for r in range(0, 8, 2):
            k(f"v_pk_mul_f32 {pr(G+r)}, {pr(G+r)}, {pr(T+r)}")
        o = O + 4 * sj
        for p in range(4):
            k(f"v_cvt_pk_bf16_f32 v{o+p}, v{G+2*p}, v{G+2*p+1}")
        k(f"buffer_store_dwordx4 v[{o}:{o+3}], v3, s[20:23], s{40+sj} offen")
    prof_stamp(k, 4)
    prof_end(k, 2, 4)
    k("s_endpgm")


def gen_gateup(opts):
    k = Stream()
    k("s_cmp_ge_u32 s2, 224")
    k("s_cbranch_scc1 L_gu_end")
    prof_begin(k)
    k("s_load_dwordx4 s[4:7], s[0:1], 56")
    k("s_load_dwordx2 s[8:9], s[0:1], 72")
    k("s_load_dwordx2 s[12:13], s[0:1], 96")
    k("v_lshrrev_b32 v2, 6, v0")
    k("v_and_b32 v1, 63, v0")
    k("v_readfirstlane_b32 s19, v2")
    map_wg(k, opts.get("gu_map", "4x7"))
    k("s_cmp_lt_u32 s19, 8")
    k("s_cbranch_scc1 L_gu_mfma")
    gen_loader(k, opts)
    k("L_gu_mfma:")
    k.wsp = True
    gen_mfma(k, opts)
    k("L_gu_end:")
    k("s_endpgm")
    return k.finish(), 160, 0
```

```python
import re

REG_RE = re.compile(r"\b([vas])(\d+)\b|\b([vas])\[(\d+):(\d+)\]|\b(vcc|exec|m0|vcc_lo|vcc_hi|exec_lo|exec_hi)\b")
TRANS = ("v_exp_f32", "v_log_f32", "v_rcp_f32", "v_rsq_f32", "v_sqrt_f32", "v_sin_f32", "v_cos_f32")
NO_DST_S = ("s_cmp", "s_waitcnt", "s_barrier", "s_branch", "s_cbranch", "s_nop", "s_endpgm", "s_setprio",
            "s_sleep", "s_bitcmp", "s_setreg", "s_sendmsg")


def regs_of(tok):
    out = set()
    for m in REG_RE.finditer(tok):
        if m.group(1):
            out.add((m.group(1), int(m.group(2))))
        elif m.group(3):
            for i in range(int(m.group(4)), int(m.group(5)) + 1):
                out.add((m.group(3), i))
        else:
            n = m.group(6)
            if n.startswith("vcc"):
                out.add(("s", "vcc"))
            elif n.startswith("exec"):
                out.add(("s", "exec"))
            else:
                out.add(("s", "m0"))
    return out


def split_ops(s):
    ops, depth, cur = [], 0, ""
    for ch in s:
        if ch == "[":
            depth += 1
        if ch == "]":
            depth -= 1
        if ch == "," and depth == 0:
            ops.append(cur.strip())
            cur = ""
        else:
            cur += ch
    if cur.strip():
        ops.append(cur.strip())
    return ops


class Ins:
    def __init__(self, text):
        self.text = text
        t = text.split(";")[0].strip()
        self.label = t.endswith(":")
        self.directive = t.startswith(".")
        parts = t.split(None, 1)
        self.op = parts[0] if parts else ""
        rest = parts[1] if len(parts) > 1 else ""
        ops = split_ops(rest)
        self.mods = ""
        if ops:
            last = ops[-1]
            m = re.match(r"^(\S+(?:\[[^\]]*\])?)\s*(.*)$", last)
            toks = last.split(None, 1)
            ops[-1] = toks[0]
            self.mods = toks[1] if len(toks) > 1 else ""
        self.ops = ops
        op = self.op
        self.mfma = op.startswith("v_mfma")
        self.valu = op.startswith("v_") and not self.mfma
        self.vmem = op.startswith(("buffer_", "global_", "flat_"))
        self.ds = op.startswith("ds_")
        self.salu = op.startswith("s_")
        self.trans = op.startswith(TRANS)
        self.dot = op.startswith("v_dot")
        self.dpp = self.valu and (op.endswith("_dpp") or re.search(r"quad_perm|row_|wave_", self.mods) is not None)
        self.permlane = op.startswith("v_permlane")
        self.readlane = op.startswith(("v_readfirstlane", "v_readlane"))
        self.ldsdma = self.vmem and (re.search(r"\blds\b", self.mods) is not None or "_lds_" in op)
        self.states = 1
        if op == "s_nop":
            self.states = int(ops[0], 0) + 1
        dst, src = set(), set()
        self.srcA = self.srcB = self.srcC = set()
        self.widedata = set()
        R = [regs_of(o) for o in ops]
        if self.mfma:
            dst = R[0]
            self.srcA, self.srcB, self.srcC = R[1], R[2], R[3]
            src = R[1] | R[2] | R[3]
            self.passes = 8 if "32x32x16" in op else 4
            assert "32x32x16_bf16" in op or "16x16x32_bf16" in op, op
        elif self.valu:
            if self.permlane or op.startswith("v_swap"):
                dst = R[0] | R[1]
                src = R[0] | R[1]
            elif op.startswith("v_cmpx"):
                dst = {("s", "exec")} | R[0]
                for r in R[1:]:
                    src |= r
            elif op.startswith("v_nop"):
                pass
            else:
                dst = R[0]
                start = 1
                if re.match(r"v_(add|sub|subrev|addc|subb)_co", op) or op.startswith("v_div_scale"):
                    dst = dst | R[1]
                    start = 2
                for r in R[start:]:
                    src |= r
                if op.startswith(("v_fmac", "v_dot2c", "v_mac", "v_pk_fmac")) or self.dpp or op.startswith("v_writelane"):
                    src |= R[0]
        elif self.vmem:
            if "store" in op or self.ldsdma or "atomic" in op or op.startswith(("buffer_wbl2", "buffer_inv")):
                for r in R:
                    src |= r
                if "store" in op and ("x3" in op or "x4" in op):
                    self.widedata = R[0] if op.startswith("buffer") else R[1]
                if "atomic" in op and "sc0" in self.mods:
                    dst = R[0]
                if self.ldsdma:
                    src.add(("s", "m0"))
            else:
                dst = R[0]
                for r in R[1:]:
                    src |= r
                if "d16" in op:
                    src |= R[0]
        elif self.ds:
            if op.startswith(("ds_write", "ds_add", "ds_max", "ds_min")) and "rtn" not in op:
                for r in R:
                    src |= r
            else:
                dst = R[0]
                for r in R[1:]:
                    src |= r
        elif self.salu:
            if op.startswith(NO_DST_S):
                for r in R:
                    src |= r
            else:
                if R:
                    dst = R[0]
                for r in R[1:]:
                    src |= r
                if "saveexec" in op:
                    dst = dst | {("s", "exec")}
        self.dst, self.src = dst, src
        self.vdst = {r for r in dst if r[0] in "va"}
        self.sdst = {r for r in dst if r[0] == "s"}
        self.vsrc = {r for r in src if r[0] in "va"}
        self.ssrc = {r for r in src if r[0] == "s"}


BIG = {4: 8, 8: 12}
OVL = {4: 6, 8: 10}
WARC = {4: 3, 8: 7}


def need(p, c):
    n = 0
    if p.valu and c.mfma and (p.vdst & c.vsrc):
        n = max(n, 2)
    if p.mfma:
        P = p.passes
        if c.mfma:
            if p.dst & (c.srcA | c.srcB):
                n = max(n, BIG[P])
            if p.dst & c.srcC:
                if p.dst == c.srcC and p.passes == c.passes:
                    pass
                else:
                    n = max(n, OVL[P])
            elif p.dst & c.dst:
                n = max(n, OVL[P])
        elif c.valu:
            if p.dst & (c.vsrc | c.vdst):
                n = max(n, BIG[P])
            if p.srcC & c.vdst:
                n = max(n, WARC[P])
        elif c.vmem or c.ds:
            if p.dst & (c.vsrc | c.vdst):
                n = max(n, BIG[P])
            if p.srcC & c.vdst:
                n = max(n, WARC[P])
    if p.valu and p.sdst:
        if c.vmem and (p.sdst & c.ssrc):
            n = max(n, 5)
        if c.valu and (p.sdst & c.ssrc):
            n = max(n, 4 if c.op.startswith(("v_readlane", "v_writelane", "v_div_fmas")) else 2)
        if ("s", "exec") in p.sdst:
            if c.dpp:
                n = max(n, 5)
            if c.mfma or c.readlane or c.permlane:
                n = max(n, 4)
    if p.valu and p.vdst:
        if (c.dpp or c.permlane) and (p.vdst & c.vsrc):
            n = max(n, 2)
        if c.readlane and (p.vdst & c.vsrc):
            n = max(n, 1)
    if p.trans and c.valu and not c.trans and (p.vdst & c.vsrc):
        n = max(n, 1)
    if p.trans and (c.vmem or c.ds) and (p.vdst & c.vsrc):
        n = max(n, 1)
    if p.salu and ("s", "m0") in p.sdst and c.ldsdma:
        n = max(n, 1)
    if p.widedata and (p.widedata & c.vdst):
        n = max(n, 2)
    if p.dot and (p.vdst & (c.vsrc | c.vdst)):
        if c.op == p.op:
            ab = set()
            for o in c.ops[1:3]:
                ab |= regs_of(o)
            if p.vdst & ab:
                n = max(n, 3)
        else:
            n = max(n, 3)
    return n


class Stream:
    def __init__(self):
        self.ins = []
        self.vm = 0
        self.lg = 0
        self.lg_done = 0
        self.vm_done = 0
        self.track = False

    def drain_lg(self):
        self("s_waitcnt lgkmcnt(0)")
        self.lg_done = self.lg

    def __call__(self, text):
        tok = None
        for line in text.split("\n"):
            line = line.strip()
            if not line or line.startswith(";"):
                continue
            i = Ins(line)
            self.ins.append(i)
            if i.vmem:
                self.vm += 1
                tok = ("vm", self.vm)
            if i.ds:
                self.lg += 1
                tok = ("lg", self.lg)
        return tok

    def wait(self, *toks, vm=None, lg=None):
        for t in toks:
            if t is None:
                continue
            if t[0] == "vm":
                if self.track and t[1] <= self.vm_done:
                    continue
                n = self.vm - t[1]
                vm = n if vm is None else min(vm, n)
            else:
                if t[1] <= self.lg_done:
                    continue
                n = self.lg - t[1]
                lg = n if lg is None else min(lg, n)
        parts = []
        if vm is not None:
            assert vm >= 0
            if vm <= 62:
                parts.append(f"vmcnt({vm})")
            else:
                parts.append("vmcnt(62)")
        if lg is not None:
            assert lg >= 0
            parts.append(f"lgkmcnt({min(lg, 14)})")
        if self.track:
            if vm is not None:
                self.vm_done = max(self.vm_done, self.vm - min(vm, 62))
            if lg is not None:
                self.lg_done = max(self.lg_done, self.lg - min(lg, 14))
        if parts:
            self("s_waitcnt " + " ".join(parts))
            return True
        return False

    def comment(self, s):
        i = Ins("; " + s)
        i.op = ""
        i.states = 0
        i.text = "; " + s
        self.ins.append(i)

    def finish(self):
        out = []
        hist = []
        nn = 0
        for c in self.ins:
            if c.op == "" or c.directive:
                out.append(c.text)
                continue
            if c.label:
                out.append(c.text)
                continue
            req = 0
            dist = 0
            for p in reversed(hist):
                r = need(p, c)
                if r - dist > req:
                    req = r - dist
                dist += p.states
                if dist > 24:
                    break
            while req > 0:
                k = min(req, 8)
                nop = Ins(f"s_nop {k - 1}")
                out.append("    " + nop.text)
                hist.append(nop)
                nn += 1
                req -= k
            out.append("    " + c.text)
            hist.append(c)
            if len(hist) > 40:
                hist = hist[-40:]
        self.nops = nn
        return "\n".join(out)


def kernel_text(name, body, vgpr, agpr=0, sgpr=102):
    acc = (vgpr + 3) // 4 * 4
    total = acc + agpr
    txt = f".text\n.globl {name}\n.p2align 8\n.type {name},@function\n{name}:\n{body}\n"
    desc = f""".section .rodata,"a"
.p2align 6
.amdhsa_kernel {name}
  .amdhsa_next_free_vgpr {total}
  .amdhsa_next_free_sgpr {sgpr}
  .amdhsa_accum_offset {acc}
  .amdhsa_group_segment_fixed_size 0
  .amdhsa_kernarg_size 104
  .amdhsa_user_sgpr_count 2
  .amdhsa_user_sgpr_kernarg_segment_ptr 1
  .amdhsa_system_sgpr_workgroup_id_x 1
.end_amdhsa_kernel
"""
    return txt, desc


PROF = {"on": False}
PROF_OFF = 0x3000000


def prof_begin(k):
    if not PROF["on"]:
        return
    k("s_memrealtime s[84:85]")
    k("s_load_dwordx2 s[72:73], s[0:1], 96")
    k("s_waitcnt lgkmcnt(0)")
    for i in range(1, 8):
        k(f"s_mov_b32 s{84+2*i}, 0")


def prof_stamp(k, i):
    if not PROF["on"]:
        return
    k(f"s_memrealtime s[{84+2*i}:{85+2*i}]")
    k("s_waitcnt lgkmcnt(0)")


def prof_clk(k, i):
    if not PROF["on"]:
        return
    k(f"s_memtime s[{84+2*i}:{85+2*i}]")
    k("s_waitcnt lgkmcnt(0)")


def prof_end(k, kidx, vtmp, drain=True):
    if not PROF["on"]:
        return
    if drain:
        k("s_waitcnt vmcnt(0)")
    k("s_memrealtime s[98:99]")
    k("s_mov_b64 exec, 1")
    k(f"s_add_u32 s76, s72, {PROF_OFF:#x}")
    k("s_addc_u32 s77, s73, 0")
    k("s_mov_b32 s78, 0x1000000")
    k("s_mov_b32 s79, 0x00020000")
    k(f"s_add_u32 s74, s2, {kidx*512}")
    k("s_lshl_b32 s74, s74, 9")
    k(f"v_lshrrev_b32 v{vtmp}, 6, v0")
    k(f"v_lshlrev_b32 v{vtmp}, 5, v{vtmp}")
    k("s_waitcnt lgkmcnt(0)")
    for i in range(8):
        k(f"v_mov_b32 v{vtmp+1}, s{84+2*i}")
        k(f"buffer_store_dword v{vtmp+1}, v{vtmp}, s[76:79], s74 offen offset:{4*i}")


def trace_dump(k, vtmp, n=14, base=56):
    if not PROF["on"]:
        return
    k("s_lshl_b32 s74, s2, 10")
    k("s_add_u32 s74, s74, 0x800000")
    k(f"v_lshlrev_b32 v{vtmp}, 1, v{vtmp}")
    for i in range(n):
        k(f"v_mov_b32 v{vtmp+1}, s{base+i}")
        k(f"buffer_store_dword v{vtmp+1}, v{vtmp}, s[76:79], s74 offen offset:{4*i}")
```

```python
from asmgen import Stream, prof_begin, prof_stamp, prof_end
from layout import *
from k_prep import srd

CSTR = 4160
KC_BYTES = 8 * CSTR
KV_BASE = 2 * KC_BYTES
KV_BYTES = 5120
EX_BASE = KV_BASE + 2 * KV_BYTES
WST = EX_BASE + 4 * 4096
LDS = WST + 4 * 4608


NEWCS = True


def gen_colsum(k):
    k("s_sub_u32 s15, s2, 224")
    k("s_lshr_b32 s15, s15, 3")
    k("s_bfe_u32 s16, s2, 0x20001")
    k("s_lshl_b32 s16, s16, 2")
    k("s_add_u32 s15, s15, s16")
    k("s_cmp_ge_u32 s15, 14")
    k("s_cbranch_scc1 L_conv_end")
    k("s_and_b32 s16, s2, 1")
    k("s_mul_i32 s16, s16, 14")
    k("s_add_u32 s15, s15, s16")
    k("s_load_dwordx4 s[4:7], s[0:1], 56")
    k("s_load_dwordx2 s[12:13], s[0:1], 96")
    k("v_and_b32 v1, 7, v0")
    k("v_lshrrev_b32 v2, 3, v0")
    k("v_mul_u32_u24 v3, 3584, v2")
    k("v_lshl_add_u32 v3, v1, 4, v3")
    k("s_lshl_b32 s16, s15, 7")
    k("v_add_u32 v3, s16, v3")
    k("s_mov_b32 s38, 0xffff0000")
    for e in range(16):
        k(f"v_mov_b32 v{8+e}, 0")
    k("s_waitcnt lgkmcnt(0)")
    srd(k, 20, 4, 5, W_BYTES)
    srd(k, 24, 6, 7, W_BYTES)
    srd(k, 32, 12, 13, WS_SMALL_END)
    toks = []
    for j in range(14):
        k(f"s_mov_b32 s17, {j*32*3584}")
        for m in range(2):
            r = 32 + (j * 2 + m) * 4
            toks.append(k(f"buffer_load_dwordx4 v[{r}:{r+3}], v3, s[{20+4*m}:{23+4*m}], s17 offen"))
    for j in range(14):
        for m in range(2):
            r = 32 + (j * 2 + m) * 4
            k.wait(toks[j * 2 + m])
            for w in range(4):
                k(f"v_lshlrev_b32 v{24+2*w}, 16, v{r+w}")
                k(f"v_and_b32 v{25+2*w}, s38, v{r+w}")
            for w in range(4):
                a = 8 + 8 * m + 2 * w
                k(f"v_pk_add_f32 v[{a}:{a+1}], v[{a}:{a+1}], v[{24+2*w}:{25+2*w}]")
    for e in range(8):
        k(f"v_permlane32_swap_b32 v{8+e}, v{16+e}")
    for e in range(8):
        k(f"v_add_f32 v{8+e}, v{8+e}, v{16+e}")
    for e in range(4):
        k(f"v_permlane16_swap_b32 v{8+e}, v{12+e}")
    for e in range(4):
        k(f"v_add_f32 v{8+e}, v{8+e}, v{12+e}")
    for e in range(4):
        k(f"v_add_f32_dpp v{8+e}, v{8+e}, v{8+e} row_ror:8 row_mask:0xf bank_mask:0xf")
    k("v_and_b32 v4, 63, v0")
    k("v_lshrrev_b32 v5, 5, v4")
    k("v_bfe_u32 v6, v4, 4, 1")
    k("v_lshlrev_b32 v7, 5, v1")
    k("v_lshl_add_u32 v7, v6, 4, v7")
    k("v_lshl_add_u32 v24, v5, 8, v7")
    k("v_lshrrev_b32 v25, 6, v0")
    k("v_lshl_add_u32 v25, v25, 9, v24")
    k("ds_write_b128 v25, v[8:11]")
    k("s_waitcnt lgkmcnt(0)")
    k("s_barrier")
    for w in range(4):
        k(f"ds_read_b128 v[{32+4*w}:{35+4*w}], v24 offset:{512*w}")
    if NEWCS:
        k("v_lshlrev_b32 v7, 1, v7")
        k("v_lshl_add_u32 v7, v5, 3, v7")
        k("s_lshl_b32 s16, s15, 9")
    else:
        k("v_mul_u32_u24 v5, 7168, v5")
        k("v_add_u32 v7, v5, v7")
        k("s_lshl_b32 s16, s15, 8")
    k(f"s_add_u32 s16, s16, {CS_OFF:#x}")
    k("s_waitcnt lgkmcnt(0)")
    for w in range(1, 4):
        for e in range(0, 4, 2):
            k(f"v_pk_add_f32 v[{32+e}:{33+e}], v[{32+e}:{33+e}], v[{32+4*w+e}:{33+4*w+e}]")
    k("v_cmp_gt_u32 vcc, 64, v0")
    k("s_and_saveexec_b64 s[48:49], vcc")
    k("s_cbranch_execz L_conv_end")
    if NEWCS:
        k("buffer_store_dwordx2 v[32:33], v7, s[32:35], s16 offen")
        k("buffer_store_dwordx2 v[34:35], v7, s[32:35], s16 offen offset:16")
    else:
        k("buffer_store_dwordx4 v[32:35], v7, s[32:35], s16 offen")
    prof_end(k, 1, 4)
    k("s_endpgm")


def gen_w2shuf(k, opts):
    SC = " sc1" if opts.get("cv_sc1") else ""
    k("s_load_dwordx2 s[4:5], s[0:1], 72")
    k("s_load_dwordx2 s[12:13], s[0:1], 96")
    k("v_lshrrev_b32 v2, 6, v0")
    k("v_and_b32 v1, 63, v0")
    k("v_readfirstlane_b32 s16, v2")
    k("s_and_b32 s14, s2, 7")
    k("s_sub_u32 s15, s2, 224")
    k("s_lshr_b32 s15, s15, 3")
    k("s_lshl_b32 s15, s15, 2")
    k("s_add_u32 s15, s15, s16")
    k("v_lshrrev_b32 v3, 3, v1")
    k("v_and_b32 v4, 7, v1")
    k("v_and_b32 v5, 6, v3")
    k("v_xor_b32 v4, v4, v5")
    k("v_and_b32 v3, 3, v3")
    k("v_lshrrev_b32 v5, 5, v1")
    k("v_mad_u32_u24 v3, v5, 56, v3")
    k("v_mul_u32_u24 v3, 896, v3")
    k("v_lshl_add_u32 v3, v4, 4, v3")
    k("s_lshl_b32 s17, s16, 14")
    k("v_lshrrev_b32 v4, 2, v1")
    k("v_lshlrev_b32 v4, 7, v4")
    k("v_bfe_u32 v5, v1, 3, 2")
    k("v_lshl_add_u32 v4, v5, 5, v4")
    k("v_and_b32 v5, 3, v1")
    k("v_lshl_add_u32 v4, v5, 3, v4")
    k("v_add_u32 v4, s17, v4")
    for j in range(4):
        k(f"v_xor_b32 v{8+j}, {32*j}, v4")
    k("v_lshlrev_b32 v12, 4, v1")
    for j in range(1, 4):
        k(f"v_add_u32 v{12+j}, {7168*j}, v12")
    k("s_mul_i32 s18, s14, %d" % (224 * 896))
    k("s_mul_i32 s19, s14, %d" % (28 * 7168))
    k(f"s_add_u32 s19, s19, {W2S_OFF:#x}")
    k("s_waitcnt lgkmcnt(0)")
    k("s_add_u32 s20, s4, s18")
    k("s_addc_u32 s21, s5, 0")
    k("s_mov_b32 s22, %d" % (224 * 896))
    k("s_mov_b32 s23, 0x00020000")
    k("s_add_u32 s24, s12, s19")
    k("s_addc_u32 s25, s13, 0")
    k("s_mov_b32 s26, %d" % (28 * 7168))
    k("s_mov_b32 s27, 0x00020000")
    toks = []
    for r in range(4):
        k(f"s_add_u32 s28, s15, {16*r}")
        k("s_mul_i32 s29, s28, 37")
        k("s_lshr_b32 s29, s29, 8")
        k("s_mul_i32 s30, s29, 7")
        k("s_sub_u32 s30, s28, s30")
        k("s_mul_i32 s31, s29, %d" % (8 * 896))
        k("s_lshl_b32 s32, s30, 7")
        k("s_add_u32 s31, s31, s32")
        k("s_mul_i32 s32, s30, %d" % (4 * 7168))
        k("s_lshl_b32 s33, s29, 10")
        k(f"s_add_u32 s{40+r}, s32, s33")
        if r == 3:
            k("s_cmp_lt_u32 s28, 49")
            k("s_cselect_b32 s31, s31, 0x1000000")
            k(f"s_cselect_b32 s{40+r}, s{40+r}, 0x1000000")
        for i4 in range(4):
            k(f"s_add_u32 m0, s17, {4096*r + 1024*i4}")
            k(f"s_add_u32 s34, s31, {(112*(i4%2) + 4*(i4//2))*896}")
            t = k("buffer_load_dwordx4 v3, s[20:23], s34 offen lds")
        toks.append(t)
    for r in range(4):
        k.wait(toks[r])
        tl = []
        for j in range(4):
            for rho in range(2):
                d = 16 + 16 * r + 4 * j + 2 * rho
                tl.append(k(f"ds_read_b64_tr_b16 v[{d}:{d+1}], v{8+j} offset:{4096*r + 2048*rho}"))
        for j in range(4):
            d = 16 + 16 * r + 4 * j
            k.wait(tl[2 * j + 1])
            k(f"buffer_store_dwordx4 v[{d}:{d+3}], v{12+j}, s[24:27], s{40+r} offen{SC}")
    prof_end(k, 1, 4)
    k("s_endpgm")


def gen_conv(opts):
    k = Stream()
    k("s_cmp_ge_u32 s2, 256")
    k("s_cbranch_scc1 L_conv_end")
    prof_begin(k)
    k("s_cmp_lt_u32 s2, 224")
    k("s_cbranch_scc1 L_conv_main")
    SHUF = NEWCS and not opts.get("cv_noshuf")
    SC = " sc1" if opts.get("cv_sc1") else ""
    if SHUF:
        gen_w2shuf(k, opts)
    else:
        gen_colsum(k)
    k("L_conv_main:")
    k.vm = 0
    k.lg = 0
    k("s_load_dwordx4 s[4:7], s[0:1], 32")
    k("s_load_dwordx2 s[12:13], s[0:1], 96")
    if SHUF:
        k("s_load_dwordx4 s[8:11], s[0:1], 56")
    k("v_lshrrev_b32 v2, 6, v0")
    k("v_and_b32 v1, 63, v0")
    k("v_readfirstlane_b32 s16, v2")
    k("s_mov_b32 s14, s2")
    k("s_lshr_b32 s17, s16, 1")
    k("s_and_b32 s18, s16, 1")
    k("s_lshl_b32 s19, s14, 1")
    k("s_add_u32 s19, s19, s17")
    k("s_lshl_b32 s19, s19, 12")
    k("v_and_b32 v3, 15, v1")
    k("v_lshrrev_b32 v4, 4, v1")
    k("s_lshl_b32 s36, s18, 11")
    k("v_lshl_add_u32 v5, v1, 4, s36")
    k("v_subrev_u32 v6, 16, v5")
    k("v_subrev_u32 v7, 480, v5")
    k("v_add_u32 v8, 1024, v7")
    k("v_add_u32 v9, 2048, v7")
    k("v_lshlrev_b32 v10, 4, v3")
    k("v_lshlrev_b32 v11, 2, v4")
    k("v_sub_u32 v10, v10, v11")
    k("v_add_u32 v10, 12, v10")
    k("s_lshl_b32 s37, s18, 10")
    k("v_add_u32 v10, s37, v10")
    k("v_lshlrev_b32 v11, 1, v10")
    k("v_lshlrev_b32 v12, 2, v10")
    k("s_mul_i32 s38, s17, %d" % KV_BYTES)
    k(f"s_add_u32 s38, s38, {KV_BASE}")
    k("s_add_u32 s39, s38, s36")
    k("s_waitcnt lgkmcnt(0)")
    k("s_add_u32 s20, s4, s19")
    k("s_addc_u32 s21, s5, 0")
    k("s_mov_b32 s22, 4096")
    k("s_mov_b32 s23, 0x00020000")
    k("s_add_u32 s24, s12, s19")
    k("s_addc_u32 s25, s13, 0")
    k("s_mov_b32 s26, 4096")
    k("s_mov_b32 s27, 0x00020000")
    k("s_lshl_b32 s40, s14, 2")
    k("s_load_dword s41, s[6:7], s40")
    tD = []
    for j in range(2):
        tD.append(k(f"buffer_load_dwordx4 v[{16+8*j}:{19+8*j}], v5, s[20:23], 0 offen offset:{1024*j}"))
        if j == 0:
            tD.append(k(f"buffer_load_dwordx4 v[{20+8*j}:{23+8*j}], v6, s[20:23], 0 offen"))
        else:
            tD.append(k(f"buffer_load_dwordx4 v[{20+8*j}:{23+8*j}], v5, s[20:23], 0 offen offset:{1024*j-16}"))
    tkv = None
    for j in range(3):
        k(f"s_add_u32 m0, s39, {1024*j}")
        tkv = k(f"buffer_load_dwordx4 v{7+j}, s[24:27], 0 offen lds")
    k(f"s_add_u32 s28, s24, {XT_OFF:#x}")
    k("s_addc_u32 s29, s25, 0")
    k("s_mov_b32 s30, 4096")
    k("s_mov_b32 s31, 0x00020000")
    srd(k, 32, 12, 13, 8192, STATS_OFF)
    for tt in range(4):
        k(f"buffer_load_dwordx2 v[{32+2*tt}:{33+2*tt}], v11, s[28:31], 0 offen offset:{512*tt}")
    for tt in range(4):
        tep = k(f"buffer_load_dwordx4 v[{40+4*tt}:{43+4*tt}], v12, s[32:35], 0 offen offset:{1024*tt}")
    if NEWCS:
        k("s_lshr_b32 s52, s19, 5")
        k(f"s_add_u32 s53, s52, {HT_OFF:#x}")
        k("s_add_u32 s28, s12, s53")
        k("s_addc_u32 s29, s13, 0")
        k(f"s_sub_u32 s30, {SD_BYTES:#x}, s52")
        k("v_lshrrev_b32 v65, 6, v10")
        k("v_mul_u32_u24 v65, 57344, v65")
        k("v_and_b32 v66, 63, v10")
        k("v_lshl_add_u32 v65, v66, 1, v65")
        for tt in range(1, 4):
            k(f"s_mov_b32 s{52+tt}, {tt*229376}")
    else:
        k(f"s_add_u32 s28, s24, {HT_OFF:#x}")
        k("s_addc_u32 s29, s25, 0")
    WS0, WF0, WON, WCS, WA = 180, 196, 212, 216, 220
    tw = []
    if SHUF:
        k("s_and_b32 s80, s2, 7")
        k("s_mul_i32 s80, s80, 28")
        k("s_lshr_b32 s81, s2, 3")
        k("s_add_u32 s80, s80, s81")
        k("s_lshl_b32 s81, s80, 4")
        k("s_add_u32 s56, s8, s81")
        k("s_addc_u32 s57, s9, 0")
        k(f"s_sub_u32 s58, {W_BYTES:#x}, s81")
        k("s_mov_b32 s59, 0x00020000")
        k("s_add_u32 s60, s10, s81")
        k("s_addc_u32 s61, s11, 0")
        k("s_mov_b32 s62, s58")
        k("s_mov_b32 s63, 0x00020000")
        k(f"v_mul_u32_u24 v{WA}, 3584, v0")
        k(f"v_add_u32 v{WA+1}, {256*3584:#x}, v{WA}")
        NT = " nt" if opts.get("cv_wnt") else ""
        for P in range(2):
            k(f"buffer_load_dwordx4 v[{WS0+8*P}:{WS0+8*P+3}], v{WA+P}, s[56:59], 0 offen{NT}")
            tw.append(k(f"buffer_load_dwordx4 v[{WS0+8*P+4}:{WS0+8*P+7}], v{WA+P}, s[60:63], 0 offen{NT}"))
        k("s_mul_i32 s81, s80, 14336")
        k(f"s_add_u32 s81, s81, {W1S_OFF:#x}")
        k("s_add_u32 s64, s12, s81")
        k("s_addc_u32 s65, s13, 0")
        k("s_mov_b32 s66, 14336")
        k("s_mov_b32 s67, 0x00020000")
        k("s_lshl_b32 s81, s80, 6")
        k(f"s_add_u32 s81, s81, {CS_OFF:#x}")
        k("s_add_u32 s68, s12, s81")
        k("s_addc_u32 s69, s13, 0")
        k("s_mov_b32 s70, 64")
        k("s_mov_b32 s71, 0x00020000")
        k("s_mul_i32 s82, s16, 4608")
        k(f"s_add_u32 s82, s82, {WST}")
        k(f"v_lshl_add_u32 v{WA+2}, v1, 4, s82")
        k(f"v_and_b32 v{WA+3}, 1, v1")
        k(f"v_mul_u32_u24 v{WA+3}, 1152, v{WA+3}")
        k(f"v_lshrrev_b32 v{WA+4}, 2, v1")
        k(f"v_lshl_add_u32 v{WA+3}, v{WA+4}, 4, v{WA+3}")
        k(f"v_bfe_u32 v{WA+4}, v1, 1, 1")
        k(f"v_lshl_add_u32 v{WA+3}, v{WA+4}, 3, v{WA+3}")
        k(f"v_add_u32 v{WA+3}, s82, v{WA+3}")
        k("s_lshl_b32 s83, s16, 11")
        k(f"v_lshl_add_u32 v{WA+4}, v1, 4, s83")
        k(f"v_add_u32 v{WA+5}, 8192, v{WA+4}")
        k(f"v_lshlrev_b32 v{WA+6}, 4, v1")
        k(f"v_add_u32 v{WA+6}, {WST}, v{WA+6}")
        k(f"v_and_b32 v{WA+7}, 0xcf, v0")
        k(f"v_lshl_add_u32 v{WA+7}, v{WA+7}, 6, v4")
        k(f"v_lshlrev_b32 v{WA+7}, 4, v{WA+7}")
        for r in range(4):
            k(f"v_mov_b32 v{WON+r}, 0x3f803f80")
    k("s_mul_i32 s42, s17, %d" % KC_BYTES)
    k("s_add_u32 s43, s42, 4080")
    k("v_sub_u32 v13, s43, v5")
    k("v_subrev_u32 v14, 1024, v13")
    k("v_and_b32 v15, 7, v1")
    k(f"v_mul_u32_u24 v15, {CSTR}, v15")
    k("v_add_u32 v15, s42, v15")
    for r in range(4):
        k(f"v_mov_b32 v{56+r}, 0")
    k("ds_write_b128 v15, v[56:59] offset:4096")
    k("v_and_b32 v60, 7, v3")
    k(f"v_mul_u32_u24 v60, {CSTR}, v60")
    k("v_lshrrev_b32 v61, 3, v3")
    k("v_add_u32 v61, v61, v4")
    k("v_lshl_add_u32 v60, v61, 4, v60")
    k("s_lshl_b32 s44, s18, 6")
    k("s_sub_u32 s45, s42, s44")
    k(f"s_add_u32 s45, s45, {4032 - 128*31}")
    k("v_add_u32 v60, s45, v60")
    k("v_lshlrev_b32 v61, 5, v3")
    k("v_lshl_add_u32 v61, v4, 4, v61")
    k("s_sub_u32 s46, s38, s44")
    k(f"s_add_u32 s46, s46, {448 - 384}")
    k("v_add_u32 v61, s46, v61")
    k("s_add_u32 s47, s38, 480")
    k("v_add_u32 v62, s47, v11")
    k("s_lshl_b32 s48, s16, 12")
    k(f"s_add_u32 s48, s48, {EX_BASE}")
    k("v_lshl_add_u32 v63, v1, 4, s48")
    k("v_xor_b32 v64, 4096, v63")
    assert EX_BASE % 8192 == 0 or True
    k("s_mov_b32 s49, 0xffff")
    EA, EB, OA, OB = 68, 77, 84, 93
    for j in range(2):
        Dn = [16 + 8 * j + 3, 16 + 8 * j + 2, 16 + 8 * j + 1, 16 + 8 * j + 0,
              20 + 8 * j + 3, 20 + 8 * j + 2, 20 + 8 * j + 1, 20 + 8 * j + 0]
        k.wait(tD[2 * j + 1])
        if j == 0:
            prof_stamp(k, 1)
        for w in range(6):
            k(f"v_alignbit_b32 v{EA+w}, v{Dn[w]}, v{Dn[w]}, 16")
        for w in range(6):
            k(f"v_bfi_b32 v{OA+w}, s49, v{Dn[w]}, v{Dn[w+1]}")
        for w in range(1, 7):
            k(f"v_alignbit_b32 v{EB+w}, v{Dn[w]}, v{Dn[w]}, 16")
        for w in range(1, 7):
            k(f"v_bfi_b32 v{OB+w}, s49, v{Dn[w]}, v{Dn[w+1]}")
        ad = 13 + j
        for a in range(4):
            if a % 2 == 0:
                e, o = EA + a, OA + a
            else:
                e, o = EB + a, OB + a
            assert e % 2 == 0 and o % 2 == 0
            k(f"ds_write_b128 v{ad}, v[{e}:{e+3}] offset:{(2*a)*CSTR}")
            k(f"ds_write_b128 v{ad}, v[{o}:{o+3}] offset:{(2*a+1)*CSTR}")
        if j == 0:
            k("s_waitcnt lgkmcnt(0)")
    k.wait(tkv)
    k("s_waitcnt lgkmcnt(0)")
    prof_stamp(k, 2)
    k("s_barrier")
    prof_stamp(k, 3)
    ACC = 100
    AR = 132
    NA = 6
    k.lg = 0
    btok = {}
    atok = {}

    def loadA(a):
        r = AR + 4 * (a % NA)
        atok[a] = k(f"ds_read_b128 v[{r}:{r+3}], v60 offset:{128*(31-a)}")

    def loadB(c):
        btok[c] = k(f"ds_read_b128 a[{4*(c+3)}:{4*(c+3)+3}], v61 offset:{128*(c+3)}")

    work = []
    for a in range(32):
        for t in range(7, a // 4 - 1, -1):
            work.append((a, t))
    needs = []
    seenA, seenB = set(), set()
    for (a, t) in work:
        n = []
        if a not in seenA:
            seenA.add(a)
            n.append(("A", a))
        c = 4 * t - a
        if c not in seenB:
            seenB.add(c)
            n.append(("B", c))
        needs.append(n)
    flat = [(i, x) for i, n in enumerate(needs) for x in n]
    LOOK = 10
    issued = 0
    first = set()
    lastA_use = {}
    for i, (a, t) in enumerate(work):
        lastA_use[a] = i
    FL = []
    if SHUF:
        ttr = {}
        for P in range(2):
            b = WS0 + 8 * P
            FL.append(lambda P=P: k.wait(tw[P]))
            FL.append(f"v_swap_b32 v{b+1}, v{b+4}")
            FL.append(f"v_swap_b32 v{b+3}, v{b+6}")
            FL.append(f"ds_write_b128 v{WA+2}, v[{b}:{b+3}] offset:{2304*P}")
            FL.append(f"ds_write_b128 v{WA+2}, v[{b+4}:{b+7}] offset:{2304*P+1152}")
        for f in range(4):
            for rho in range(2):
                d = WF0 + 4 * f + 2 * rho
                FL.append(lambda f=f, d=d, rho=rho: ttr.__setitem__(f, k(f"ds_read_b64_tr_b16 v[{d}:{d+1}], v{WA+3} offset:{2304*(f//2) + 512*(f%2) + 256*rho}")))
        FL += [None] * int(opts.get("cv_wgap", 3))
        for f in range(4):
            d = WF0 + 4 * f
            FL.append(lambda f=f: k.wait(ttr[f]))
            FL.append(f"buffer_store_dwordx4 v[{d}:{d+3}], v{WA+4+f//2}, s[64:67], 0 offen offset:{1024*(f%2)}{SC}")
            FL.append(f"v_mfma_f32_16x16x32_bf16 v[{WCS}:{WCS+3}], v[{d}:{d+3}], v[{WON}:{WON+3}], {'0' if f == 0 else f'v[{WCS}:{WCS+3}]'}")
        FL += [None] * 4
        FL.append(f"ds_write_b128 v{WA+2}, v[{WCS}:{WCS+3}]")
    WAT = int(opts.get("cv_wat", 90))
    for i, (a, t) in enumerate(work):
        if i >= WAT and FL:
            x = FL.pop(0)
            if callable(x):
                x()
            elif x:
                k(x)
        while issued < len(flat):
            idx, (kind, v) = flat[issued]
            pend = sum(1 for q in range(issued) if flat[q][0] > i)
            if idx > i and pend >= LOOK:
                break
            if kind == "A" and v >= NA and lastA_use[v - NA] >= i:
                break
            (loadA if kind == "A" else loadB)(v)
            issued += 1
        c = 4 * t - a
        toks = []
        if needs[i]:
            toks = [atok[a], btok[c]]
            k.wait(*toks)
        r = AR + 4 * (a % NA)
        acc = ACC + 4 * t
        cc = "0" if t not in first else f"v[{acc}:{acc+3}]"
        first.add(t)
        k(f"v_mfma_f32_16x16x32_bf16 v[{acc}:{acc+3}], v[{r}:{r+3}], a[{4*(c+3)}:{4*(c+3)+3}], {cc}")
    assert not FL
    prof_stamp(k, 4)
    k("s_cmp_eq_u32 s18, 0")
    k("s_cbranch_scc1 L_conv_noswap")
    for r in range(16):
        k(f"v_swap_b32 v{ACC+r}, v{ACC+16+r}")
    k("L_conv_noswap:")
    k("s_nop 7")
    for tt in range(4):
        r = ACC + 16 + 4 * tt
        k(f"ds_write_b128 v63, v[{r}:{r+3}] offset:{1024*tt}")
    kvt = []
    for tt in range(4):
        kvt.append(k(f"ds_read_b64 v[{68+2*tt}:{69+2*tt}], v62 offset:{512*tt}"))
    k("s_lshl_b32 s50, s41, 16")
    k("s_and_b32 s51, s41, 0xffff0000")
    k("s_cmp_eq_u32 s17, 0")
    k("s_cselect_b32 s50, s50, s51")
    k("s_mov_b32 s51, 0xffff0000")
    k("s_waitcnt lgkmcnt(0)")
    k("s_barrier")
    for tt in range(4):
        r = 132 + 4 * tt
        k(f"ds_read_b128 v[{r}:{r+3}], v64 offset:{1024*tt}")
    if SHUF:
        for w in range(4):
            k(f"ds_read_b128 v[{WS0+4*w}:{WS0+4*w+3}], v{WA+6} offset:{4608*w}")
    k.wait(tep)
    for tt in range(4):
        for e in range(4):
            xs = 32 + 2 * tt + e // 2
            xf = 148 + 4 * tt + e
            q = 164 + 4 * tt + e
            st = 40 + 4 * tt + e
            if e % 2 == 0:
                k(f"v_lshlrev_b32 v{xf}, 16, v{xs}")
            else:
                k(f"v_and_b32 v{xf}, s51, v{xs}")
            k(f"v_lshlrev_b32 v{q}, 16, v{st}")
            k(f"v_and_b32 v{st}, s51, v{st}")
            k(f"v_rcp_f32 v{st}, v{st}")
            k(f"v_sub_f32 v{q}, v{xf}, v{q}")
            k(f"v_mul_f32 v{q}, v{q}, v{st}")
    k("s_waitcnt lgkmcnt(0)")
    for tt in range(4):
        for e in range(4):
            acc = ACC + 4 * tt + 3 - e
            oth = 132 + 4 * tt + 3 - e
            ks = 68 + 2 * tt + e // 2
            kf = 40 + 4 * tt + e
            if e % 2 == 0:
                k(f"v_lshlrev_b32 v{kf}, 16, v{ks}")
            else:
                k(f"v_and_b32 v{kf}, s51, v{ks}")
            k(f"v_add_f32 v{acc}, v{acc}, v{oth}")
            k(f"v_fmac_f32 v{acc}, s50, v{kf}")
            xf = 148 + 4 * tt + e
            q = 164 + 4 * tt + e
            k(f"v_fmac_f32 v{xf}, v{q}, v{acc}")
        o = 32 + 2 * tt
        xf = 148 + 4 * tt
        k(f"v_cvt_pk_bf16_f32 v{o}, v{xf}, v{xf+1}")
        k(f"v_cvt_pk_bf16_f32 v{o+1}, v{xf+2}, v{xf+3}")
        if NEWCS:
            k(f"buffer_store_dwordx2 v[{o}:{o+1}], v65, s[28:31], {'s%d' % (52+tt) if tt else '0'} offen")
        else:
            k(f"buffer_store_dwordx2 v[{o}:{o+1}], v11, s[28:31], 0 offen offset:{512*tt}")
    if SHUF:
        for e in range(0, 4, 2):
            k(f"v_pk_add_f32 v[{WS0+e}:{WS0+e+1}], v[{WS0+e}:{WS0+e+1}], v[{WS0+4+e}:{WS0+5+e}]")
            k(f"v_pk_add_f32 v[{WS0+8+e}:{WS0+9+e}], v[{WS0+8+e}:{WS0+9+e}], v[{WS0+12+e}:{WS0+13+e}]")
        for e in range(0, 4, 2):
            k(f"v_pk_add_f32 v[{WS0+e}:{WS0+e+1}], v[{WS0+e}:{WS0+e+1}], v[{WS0+8+e}:{WS0+9+e}]")
        k(f"buffer_store_dwordx4 v[{WS0}:{WS0+3}], v{WA+7}, s[68:71], 0 offen")
    prof_stamp(k, 5)
    prof_end(k, 1, 4)
    k("L_conv_end:")
    k("s_endpgm")
    return k.finish(), 228 if SHUF else 180, 128
```

```python
from asmgen import Ins, Stream, prof_clk, prof_begin, prof_stamp, prof_end
from layout import *
from k_prep import srd

HIMG = 0
HHB = 57344
STB = HHB + 28672
LDS = STB + 2048
LOG2E = 1.4426950408889634

VA = 4
TRA, HWA, BRA = 8, 12, 16
ONES, S1, S2 = 20, 24, 28
ST = 32
CS = 48
TM = 76
ACC = 92
SO = [None, 3, 16, 18, 40, 42, 43]
NACC = 5
RNG = ACC + 16 * NACC
NRV = (256 - RNG) // 4


def ring_reg(r):
    if r < NRV:
        b = RNG + 4 * r
        return f"v[{b}:{b+3}]"
    b = 224 + 4 * (r - NRV)
    assert b < 256
    return f"a[{b}:{b+3}]"


def pr(r):
    return f"v[{r}:{r+1}]"


def gen_ffn(opts):
    RING = int(opts.get("ff_ring", 24))
    INIT = int(opts.get("ff_init", 5))
    GAP = int(opts.get("ff_gap", 2))
    SC = " sc1" if opts.get("ff_sc1") else ""
    k = Stream()
    k("s_cmp_ge_u32 s2, 256")
    k("s_cbranch_scc1 L_ff_end")
    prof_begin(k)
    k("s_load_dwordx2 s[12:13], s[0:1], 96")
    k("v_lshrrev_b32 v2, 6, v0")
    k("v_and_b32 v1, 63, v0")
    k("v_readfirstlane_b32 s19, v2")
    FBX = int(opts.get("ff_fbx", 2))
    k(f"s_and_b32 s15, s2, {(1 << (3 - FBX)) - 1}")
    k(f"s_lshl_b32 s15, s15, {FBX}")
    k(f"s_bfe_u32 s16, s2, {3 | (FBX << 16):#x}")
    k("s_or_b32 s15, s15, s16")
    k(f"s_bfe_u32 s14, s2, {(3 - FBX) | (FBX << 16):#x}")
    k(f"s_lshl_b32 s14, s14, {5 - FBX}")
    k(f"s_lshr_b32 s16, s2, {3 + FBX}")
    k("s_or_b32 s14, s14, s16")
    k("v_lshrrev_b32 v100, 3, v1")
    k("v_and_b32 v101, 7, v1")
    k("v_and_b32 v102, 6, v100")
    k("v_xor_b32 v101, v101, v102")
    k("v_lshlrev_b32 v100, 7, v100")
    k(f"v_lshl_add_u32 v{TM}, v101, 4, v100")
    k("s_mul_i32 s17, s19, 14336")
    k("s_mul_i32 s18, s14, 57344")
    k(f"s_add_u32 s40, s18, {HT_OFF:#x}")
    k("s_mov_b32 s22, 57344")
    k("s_mov_b32 s23, 0x00020000")
    k("s_lshl_b32 s41, s15, 2")
    k("s_add_u32 s41, s41, s19")
    k("s_mul_i32 s42, s41, 100352")
    k(f"s_add_u32 s42, s42, {W1S_OFF:#x}")
    k("s_mov_b32 s26, 100352")
    k("s_mov_b32 s27, 0x00020000")
    k(f"v_lshlrev_b32 v{VA}, 4, v1")
    for r in range(1, 4):
        k(f"v_add_u32 v{VA+r}, {4096*r}, v{VA}")
    k("s_mov_b32 m0, s17")
    k("s_waitcnt lgkmcnt(0)")
    k("s_add_u32 s20, s12, s40")
    k("s_addc_u32 s21, s13, 0")
    k("s_add_u32 s24, s12, s42")
    k("s_addc_u32 s25, s13, 0")
    th = None
    for i in range(14):
        if i and i % 4 == 0:
            k("s_add_u32 s17, s17, 4096")
            k("s_mov_b32 m0, s17")
        th = k(f"buffer_load_dwordx4 v{TM}, s[20:23], s17 offen offset:{(i % 4)*1024} lds")

    W = int(opts.get("ff_w", 3))
    p2 = [(p, t) for p in range(W) for t in range(5)] + [(p, t) for t in (5, 6) for p in range(W)]
    for p in range(W, 7):
        p2 += [(p, t) for t in range(7)]
    NF = 98 + 49
    ta = {}
    st = {"issued": 0, "so": None}

    def loadA():
        i = st["issued"]
        st["issued"] += 1
        r = ring_reg(i % RING)
        if opts.get("ff_noload") and i >= RING:
            ta[i] = None
            return
        if i < 98:
            so = f"s{SO[i // 16]}" if i >= 16 else "0"
            ta[i] = k(f"buffer_load_dwordx4 {r}, v{VA + (i // 4) % 4}, s[24:27], {so} offen offset:{(i % 4)*1024}")
        else:
            p, t = p2[i - 98]
            ta[i] = k(f"buffer_load_dwordx4 {r}, v{VA + t // 4}, s[28:31], s{50+p} offen offset:{(t % 4)*1024}")

    for _ in range(INIT):
        loadA()
    k("s_mul_i32 s44, s41, 448")
    k(f"s_add_u32 s44, s44, {CS_OFF:#x}")
    k("s_add_u32 s32, s12, s44")
    k("s_addc_u32 s33, s13, 0")
    k("s_mov_b32 s34, 448")
    k("s_mov_b32 s35, 0x00020000")
    k("v_lshrrev_b32 v101, 4, v1")
    k(f"v_lshlrev_b32 v{TM+1}, 4, v101")
    tcs = None
    for t in range(7):
        tcs = k(f"buffer_load_dwordx4 v[{CS+4*t}:{CS+4*t+3}], v{TM+1}, s[32:35], 0 offen offset:{64*t}")
    k("s_mul_i32 s44, s41, 50176")
    k(f"s_add_u32 s44, s44, {W2S_OFF:#x}")
    k("s_add_u32 s28, s12, s44")
    k("s_addc_u32 s29, s13, 0")
    k("s_mov_b32 s30, 50176")
    k("s_mov_b32 s31, 0x00020000")
    srd(k, 36, 12, 13, P_BYTES, P_OFF)
    k("s_lshl_b32 s45, s14, 2")
    k("s_add_u32 s45, s45, s19")
    k("s_mul_i32 s45, s45, 14336")
    k(f"s_mul_i32 s46, s15, {P_SLAB}")
    k("s_add_u32 s46, s46, s45")
    k("s_mov_b32 s47, s15")
    for p in range(7):
        k("s_add_u32 s47, s47, 1")
        k("s_cmp_ge_u32 s47, 7")
        k("s_cselect_b32 s48, 7, 0")
        k("s_sub_u32 s47, s47, s48")
        k(f"s_mul_i32 s{50+p}, s47, 7168")
        k("s_lshl_b32 s48, s47, 11")
        k(f"s_add_u32 s{60+p}, s46, s48")
    k("s_add_u32 s67, s45, s48")
    k(f"s_add_u32 s67, s67, {8*P_SLAB:#x}")
    k("s_mul_i32 s68, s19, 7")
    k("s_add_u32 s68, s68, s47")
    k("s_lshl_b32 s68, s68, 11")
    k("v_lshrrev_b32 v102, 2, v1")
    k("v_lshlrev_b32 v102, 7, v102")
    k("v_bfe_u32 v103, v1, 3, 2")
    k("v_lshl_add_u32 v102, v103, 5, v102")
    k("v_and_b32 v103, 3, v1")
    k(f"v_lshl_add_u32 v{TM+2}, v103, 3, v102")
    k("v_and_b32 v102, 15, v1")
    k(f"v_lshlrev_b32 v{TM+4}, 4, v102")
    k(f"v_lshl_add_u32 v{TM+3}, v101, 2, v{TM+4}")
    k("s_lshl_b32 s48, s19, 8")
    k(f"s_add_u32 s48, s48, {HHB}")
    k(f"v_add_u32 v{TM+3}, s48, v{TM+3}")
    k("v_lshrrev_b32 v102, 2, v102")
    k("v_cmp_eq_u32 vcc, v102, v101")
    k(f"s_add_u32 s49, s48, {STB - HHB}")
    k(f"v_add_u32 v102, s49, v{TM+4}")
    k(f"v_add_u32 v103, {STB + 1024}, v{VA}")
    SWA, SRA = ST + 3, ST + 7
    k(f"v_cndmask_b32 v{SWA}, v103, v102, vcc")
    k(f"v_add_u32 v{SRA}, {STB}, v{TM+4}")
    for j in range(4):
        k(f"s_add_u32 s48, s19, {j}")
        k("s_and_b32 s48, s48, 3")
        k("s_lshl_b32 s49, s48, 5")
        k(f"v_xor_b32 v{TRA+j}, s49, v{TM+2}")
        k("s_lshl_b32 s49, s48, 10")
        k(f"v_add_u32 v{HWA+j}, s49, v{TM+3}")
        k(f"s_add_u32 s49, s49, {HHB}")
        k(f"v_add_u32 v{BRA+j}, s49, v{VA}")
        k(f"s_lshl_b32 s{4+j}, s48, 8")
    for r in range(4):
        k(f"v_mov_b32 v{ONES+r}, 0x3f803f80")
    for i in range(1, 7):
        k(f"s_mov_b32 s{SO[i]}, {i*16384:#x}")
    k("s_mov_b32 s8, 0x22222222")
    k("s_mov_b32 s9, 0x22222222")
    k("s_mov_b32 s10, 0x44444444")
    k("s_mov_b32 s11, 0x44444444")
    k("s_mov_b32 s70, 0x88888888")
    k("s_mov_b32 s71, 0x88888888")
    k.wait(th)
    k("s_barrier")
    CK = [int(x) for x in opts["ff_ck"].split(":")] if "ff_ck" in opts else None
    if not CK:
        prof_stamp(k, 1)
        prof_clk(k, 5)

    k.track = True
    tb1, tb2, tst, tres = {}, {}, {}, {}
    slots = []
    for ks in range(14):
        slots.append(dict(kind="s1", ks=ks))
        slots.append(dict(kind="s2", ks=ks))
    for t in range(7):
        for ks in range(14):
            for j in range(4):
                slots.append(dict(kind="g", t=t, ks=ks, j=j, f=14 * t + ks, last=j == 3))
    P2S = len(slots)
    for n, (p, t) in enumerate(p2):
        for j in range(4):
            slots.append(dict(kind="d", p=p, t=t, j=j, f=98 + n, last=j == 3))
    NS = len(slots)

    def tile_start(t):
        return 28 + 56 * t

    class It:
        def __init__(self, text=None, ready=0, rec=None, fn=None, cost=None, tag=None, pre=None):
            self.text, self.ready, self.rec, self.fn, self.tag, self.pre = text, ready, rec, fn, tag, pre
            self.ins = Ins(text) if text else None
            self.cost = cost if cost is not None else (8 if self.ins.trans else 4)

        def emit(self):
            if self.fn:
                self.fn()
                return
            if self.pre:
                k.wait(*self.pre())
            t = k(self.text)
            if self.rec:
                self.rec[0][self.rec[1]] = t

    def conflict(a, b):
        if a.fn or b.fn:
            return True
        x, y = a.ins, b.ins
        if (x.ds and y.ds) or (x.vmem and y.vmem):
            return True
        return bool((x.dst & (y.src | y.dst)) or (x.src & y.dst))

    Q = []

    def bar():
        k.drain_lg()
        k("s_barrier")

    def BAR(ready=0, tag=None):
        return It(fn=bar, ready=ready, cost=8, tag=tag)

    b1 = []
    for ks, j in [(ks, 0) for ks in range(14)] + [(ks, j) for ks in range(14) for j in range(1, 4)]:
        for rho in range(2):
            r = 16 * ks + 4 * j + 2 * rho
            b1.append(It(f"ds_read_b64_tr_b16 a[{r}:{r+1}], v{TRA+j} offset:{ks*4096 + rho*2048}", rec=(tb1, (ks, j))))
    PRE = int(opts.get("ff_pre", 14))
    for it in b1[:PRE]:
        it.emit()
    FINAT = int(opts.get("ff_finat", 84))
    Q += b1[PRE:FINAT]

    def rdB2(t, ready):
        return [It(f"ds_read_b128 a[{16*t+4*j}:{16*t+4*j+3}], v{BRA+j} offset:{t*4096}", rec=(tb2, (t, j)), ready=ready) for j in range(4)]

    x, y, o = TM, TM + 1, ST
    fin = [f"v_cndmask_b32 v{y}, v{S2}, v{S2+1}, s[8:9]",
           f"v_mul_f32 v{x}, {f2h(1.0/448.0)}, v{S1}",
           f"v_cndmask_b32 v{y}, v{y}, v{S2+2}, s[10:11]",
           f"v_cvt_pk_bf16_f32 v{o}, -v{x}, -v{x}",
           f"v_cndmask_b32 v{y}, v{y}, v{S2+3}, s[70:71]",
           f"v_lshlrev_b32 v{o}, 16, v{o}",
           f"v_mul_f32 v{y}, {f2h(1.0/448.0)}, v{y}",
           f"v_fma_f32 v{y}, -v{x}, v{x}, v{y}",
           f"v_max_f32 v{y}, 0, v{y}",
           f"v_cvt_pk_bf16_f32 v{y}, v{y}, v{y}",
           f"v_lshlrev_b32 v{y}, 16, v{y}",
           f"v_add_f32 v{y}, {f2h(1e-5)}, v{y}",
           f"v_cvt_pk_bf16_f32 v{y}, v{y}, v{y}",
           f"v_lshlrev_b32 v{y}, 16, v{y}",
           f"v_sqrt_f32 v{y}, v{y}",
           f"v_add_u32 v{TM+2}, s4, v{SRA}",
           f"v_cvt_pk_bf16_f32 v{y}, v{y}, v{y}",
           f"v_lshlrev_b32 v{y}, 16, v{y}",
           f"v_rcp_f32 v{o+1}, v{y}",
           f"v_mul_f32 v{o+2}, v{y}, v{y}",
           f"v_mul_f32 v{o+1}, {f2h(-LOG2E)}, v{o+1}",
           f"v_add_u32 v{TM+3}, s5, v{SRA}",
           f"ds_write_b96 v{SWA}, v[{o}:{o+2}]",
           f"v_add_u32 v{TM+4}, s6, v{SRA}",
           f"v_add_u32 v{TM+5}, s7, v{SRA}"]
    fin = [It(t, ready=tile_start(0) + 3) for t in fin]
    rest = b1[FINAT:]
    while fin or rest:
        if rest:
            Q.append(rest.pop(0))
        if fin and (not fin[0].ins.ds or not rest):
            Q.append(fin.pop(0))
    res = [It(f"v_add_u32 v{TM+8+j}, s68, v{TRA+j}") for j in range(4)]
    Q += res
    Q.append(BAR())
    Q += [It(f"ds_read_b96 v[{ST+4*j}:{ST+4*j+2}], v{TM+2+j}", rec=(tst, j)) for j in range(4)]
    Q += [It(f"ds_read_b64_tr_b16 v[{ONES+2*j}:{ONES+2*j+1}], v{TM+8+j}", rec=(tres, j)) for j in range(4)]
    Q.append(It(fn=lambda: None, cost=0, tag="gap6"))
    Q.append(It(fn=lambda: k.wait(tres[3], tcs), cost=4))
    Q += [It(f"buffer_store_dwordx4 v[{ONES+4*jp}:{ONES+4*jp+3}], v{VA}, s[36:39], s67 offen offset:{1024*jp}{SC}") for jp in range(2)]

    def epi(t):
        A = ACC + 16 * (t % NACC)
        c = CS + 4 * t
        rdy = (tile_start(t + 1) if t < 6 else P2S) + 3
        out = []
        J = range(4)
        for j in J:
            G, T, m = A + 4 * j, TM + 2 * j, ST + 4 * j
            o1 = [f"v_fmac_f32 v{G+e}, v{m}, v{c+e}" for e in range(2)]
            o1 += [f"v_mul_f32 v{T+e}, v{m+1}, v{G+e}" for e in range(2)]
            o1 += [f"v_exp_f32 v{T+e}, v{T+e}" for e in range(2)]
            o1 += [f"v_fmac_f32 v{G+2+e}, v{m}, v{c+2+e}" for e in range(2)]
            o1 += [f"v_fma_f32 v{T+e}, v{T+e}, v{m+2}, v{m+2}" for e in range(2)]
            o1 += [f"v_rcp_f32 v{T+e}, v{T+e}" for e in range(2)]
            o1 += [f"v_mul_f32 v{G+e}, v{G+e}, v{G+2+e}" for e in range(2)]
            o1 += [f"v_mul_f32 v{G+e}, v{G+e}, v{T+e}" for e in range(2)]
            o1 += [f"v_cvt_pk_bf16_f32 v{G+2}, v{G}, v{G+1}"]
            o1 += [f"ds_write_b32 v{HWA+j}, v{G+2} offset:{t*4096}"]
            out += o1[-2:] if opts.get("ff_noepi") else o1
        its = [It(x, ready=rdy) for x in out]
        its[-1].tag = ("E", t)
        return its

    t6 = tile_start(6)
    for t in range(5):
        Q += epi(t)
    Q.append(BAR(ready=t6 - 4))
    e5 = epi(5)
    for t in range(5):
        Q += e5[:8]
        e5 = e5[8:]
        Q += rdB2(t, t6 + 4 * (t + 1) + 1)
    Q += e5
    Q.append(BAR())
    Q += rdB2(5, t6 + 25)
    Q += epi(6)
    Q.append(BAR())
    Q += rdB2(6, t6 + 29)

    buf = [(7 + p) % NACC for p in range(7)]
    endp = {}
    for n, (p, t) in enumerate(p2):
        if t == 6:
            endp[p] = P2S + 4 * n + 4
    for p in range(7):
        A = ACC + 16 * buf[p]
        O = TM + 8 * (p % 2)
        for jp in range(2):
            for h in range(4):
                Q.append(It(f"v_cvt_pk_bf16_f32 v{O+4*jp+h}, v{A+8*jp+2*h}, v{A+8*jp+2*h+1}", ready=endp[p] + 4))
            Q.append(It(f"buffer_store_dwordx4 v[{O+4*jp}:{O+4*jp+3}], v{VA}, s[36:39], s{60+p} offen offset:{1024*jp}{SC}"))
        Q[-2].tag = ("S", p)

    doneT = {}
    WIN = int(opts.get("ff_win", 48))
    BUD = int(opts.get("ff_bud", 8))
    BUD0 = int(opts.get("ff_bud0", 12))
    WG = int(opts.get("ff_wg", 4))
    hold = [0]

    def fill(si, budget):
        wrote = set()
        while Q and budget > 0 and si >= hold[0]:
            pick = None
            for qi in range(min(WIN, len(Q))):
                it = Q[qi]
                if it.ready > si:
                    break
                if any(conflict(Q[e], it) for e in range(qi)):
                    if it.fn:
                        break
                    continue
                if it.cost > budget and not (it.fn and budget >= 4):
                    if it.fn:
                        break
                    continue
                if it.ins is not None and (it.ins.src & wrote):
                    continue
                pick = qi
                break
            if pick is None:
                break
            it = Q.pop(pick)
            it.emit()
            budget -= it.cost
            if it.ins is not None:
                wrote |= it.ins.dst
            if it.tag == "gap6":
                hold[0] = si + 6
            elif it.tag:
                doneT[it.tag] = si

    def needs(sl):
        need = []
        if sl["kind"] == "s1":
            need.append(tb1[(sl["ks"], 0)])
        if sl["kind"] in ("g", "d") and sl["j"] == 0:
            f = sl["f"]
            if f % WG == 0 or f < 14:
                fe = f if f < 14 else min(f + WG - 1, NF - 1)
                while fe not in ta:
                    fe -= 1
                assert fe >= f
                need.append(ta[fe])
            else:
                need.append(ta[f])
            if sl["kind"] == "g" and sl["t"] == 0:
                need.append(tb1[(sl["ks"], 3)])
            if sl["kind"] == "d" and sl["p"] == 0:
                need.append(tb2[(sl["t"], 3)])
        return need

    def will_wait(sl):
        if sl["kind"] == "s1":
            return True
        if sl["kind"] not in ("g", "d") or sl["j"] != 0:
            return False
        f = sl["f"]
        return f % WG == 0 or f < 14 or (sl["kind"] == "d" and sl["p"] == 0)

    done = 0
    lastld = -10
    for si, sl in enumerate(slots):
        if si == P2S and not CK:
            prof_stamp(k, 2)
        if CK and si in CK:
            k(f"s_memtime s[{86+2*CK.index(si)}:{87+2*CK.index(si)}]")
            k.drain_lg()
        kind = sl["kind"]
        if opts.get("ff_dbg") and si in (P2S, P2S + 20, P2S + 40):
            print(si, "left", len(Q), {str(a): b for a, b in doneT.items()})
        k.wait(*needs(sl))
        if kind == "g":
            t, ks, j = sl["t"], sl["ks"], sl["j"]
            if ks == 0 and t >= NACC:
                assert ("E", t - NACC) in doneT, (t, si)
            a = ACC + 16 * (t % NACC) + 4 * j
            c = "0" if ks == 0 else f"v[{a}:{a+3}]"
            b = 16 * ks + 4 * j
            k(f"v_mfma_f32_16x16x32_bf16 v[{a}:{a+3}], {ring_reg(sl['f'] % RING)}, a[{b}:{b+3}], {c}")
        elif kind in ("s1", "s2"):
            ks = sl["ks"]
            b = 16 * ks
            a = S1 if kind == "s1" else S2
            c = "0" if ks == 0 else f"v[{a}:{a+3}]"
            A = f"v[{ONES}:{ONES+3}]" if kind == "s1" else f"a[{b}:{b+3}]"
            k(f"v_mfma_f32_16x16x32_bf16 v[{a}:{a+3}], {A}, a[{b}:{b+3}], {c}")
        else:
            p, t, j = sl["p"], sl["t"], sl["j"]
            if t == 0:
                prev = 7 + p - NACC
                assert (("E", prev) if prev < 7 else ("S", prev - 7)) in doneT, (p, si)
            a = ACC + 16 * buf[p] + 4 * j
            c = "0" if t == 0 else f"v[{a}:{a+3}]"
            b = 16 * t + 4 * j
            k(f"v_mfma_f32_16x16x32_bf16 v[{a}:{a+3}], {ring_reg(sl['f'] % RING)}, a[{b}:{b+3}], {c}")
        if sl.get("last"):
            done += 1
        budget = BUD0 if si < 84 else BUD
        if si >= int(opts.get("ff_b2at", P2S)) and (6, 3) not in tb2:
            budget = int(opts.get("ff_bud2", 12))
        if si + 1 < NS and will_wait(slots[si + 1]):
            budget -= 4
        elif st["issued"] < min(NF, done + RING) and si - lastld >= GAP:
            n0 = len(k.ins)
            loadA()
            lastld = si
            budget -= 4 * (len(k.ins) - n0)
        fill(si, budget)
    if not CK:
        prof_clk(k, 6)
        prof_stamp(k, 3)
    if opts.get("ff_dbg"):
        print("P2S", P2S, "NS", NS, "left", len(Q), {str(a): b for a, b in doneT.items()})
    for it in Q:
        it.emit()
    assert st["issued"] == NF
    if not CK:
        prof_stamp(k, 4)
    prof_end(k, 2, 4)
    k("L_ff_end:")
    k("s_endpgm")
    return k.finish(), 256, 256
```

```python
from asmgen import Stream, prof_clk, prof_begin, prof_stamp, prof_end
from layout import *
from k_prep import srd


def gen_red(opts):
    k = Stream()
    k("s_cmp_ge_u32 s2, 256")
    k("s_cbranch_scc1 L_rd_end")
    prof_begin(k)
    k("s_load_dwordx2 s[6:7], s[0:1], 80")
    k("s_load_dwordx2 s[12:13], s[0:1], 96")
    k("v_and_b32 v1, 63, v0")
    k("v_lshrrev_b32 v2, 6, v0")
    k("s_lshr_b32 s14, s2, 1")
    k("s_and_b32 s15, s2, 1")
    k("s_mul_i32 s16, s14, 14336")
    k("s_lshl_b32 s17, s15, 10")
    k("s_add_u32 s16, s16, s17")
    k("v_lshlrev_b32 v3, 11, v2")
    k("v_lshl_add_u32 v3, v1, 4, v3")
    k("v_add_u32 v3, s16, v3")
    k("s_waitcnt lgkmcnt(0)")
    srd(k, 20, 12, 13, P_BYTES, P_OFF)
    tk = []
    for i in range(9):
        k(f"s_mov_b32 s18, {i*P_SLAB:#x}")
        tk.append(k(f"buffer_load_dwordx4 v[{16+4*i}:{19+4*i}], v3, s[20:23], s18 offen"))
    srd(k, 24, 6, 7, SD_BYTES)
    k("s_and_b32 s30, s14, 3")
    k("s_lshr_b32 s31, s14, 2")
    k("s_lshl_b32 s17, s15, 1")
    k("s_add_u32 s17, s17, s30")
    k("v_bfe_u32 v4, v1, 4, 1")
    k("v_add_u32 v4, s17, v4")
    k("v_and_b32 v4, 3, v4")
    k("v_and_b32 v5, 15, v1")
    k("v_lshl_add_u32 v4, v4, 4, v5")
    k("s_lshl_b32 s31, s31, 6")
    k("v_add_u32 v4, s31, v4")
    k("v_mul_u32_u24 v4, 896, v4")
    k("v_lshl_add_u32 v4, v2, 5, v4")
    k("v_lshrrev_b32 v5, 5, v1")
    k("v_lshl_add_u32 v4, v5, 4, v4")
    k("s_mul_i32 s30, s30, 224")
    k("s_mov_b32 s32, 0x00003f80")
    k("s_mov_b32 s33, 0x3f800000")
    k("s_mov_b32 s34, 0xffff0000")
    for i in range(9):
        k.wait(tk[i])
        for w in range(4):
            r = 16 + 4 * i + w
            if i == 0:
                k(f"v_lshlrev_b32 v{8+2*w}, 16, v{r}")
                k(f"v_and_b32 v{9+2*w}, s34, v{r}")
            else:
                k(f"v_dot2_f32_bf16 v{8+2*w}, v{r}, s32, v{8+2*w}")
                k(f"v_dot2_f32_bf16 v{9+2*w}, v{r}, s33, v{9+2*w}")
    for w in range(4):
        k(f"v_cvt_pk_bf16_f32 v{16+w}, v{8+2*w}, v{9+2*w}")
    k("v_permlane16_swap_b32 v16, v18")
    k("v_permlane16_swap_b32 v17, v19")
    k("buffer_store_dwordx4 v[16:19], v4, s[24:27], s30 offen")
    prof_end(k, 3, 4)
    k("L_rd_end:")
    k("s_endpgm")
    return k.finish(), 56, 0
```

```python
import struct
S, D, F = 2048, 448, 1792
SD_BYTES = S * D * 2
W_BYTES = D * F * 2
KVT_OFF = 0x000000
XT_OFF = 0x1C0000
HT_OFF = 0x380000
HR_OFF = 0x540000
STATS_OFF = 0x700000
CS_OFF = 0x702000
R2_OFF = 0x706000
WS_SMALL_END = 0x708000
HH_OFF = 0x800000
HH_BYTES = S * F * 2


def f2h(x):
    return "0x%08x" % struct.unpack("<I", struct.pack("<f", x))[0]

W1S_OFF = 0x1000000
W1S_BYTES = 224 * 14 * 1024
W2S_OFF = 0x1400000
W2S_BYTES = 8 * 28 * 7 * 1024
P_OFF = 0x1800000
P_SLAB = 32 * 4 * 14336
P_BYTES = 9 * P_SLAB
```

```python
import sys, os
sys.path.insert(0, os.path.dirname(__file__))
from asmgen import kernel_text
import importlib

NAME = "sequential_preLN__ssm_conv_h3__glu_gated_swiglu__prompt"

def build(out, which=("prep", "conv", "gateup", "down"), extra_empty=0, opts=None):
    opts = opts or {}
    import k_prep
    kers = []
    if "prep" in which:
        kers.append(("prep_kernel", k_prep.gen_prep(opts), (256, 256, 0)))
    if "conv" in which:
        import k_conv
        k_conv.NEWCS = "ffn" in which
        kers.append(("conv_kernel", k_conv.gen_conv(opts), (256, 256, k_conv.LDS)))
    if "gateup" in which:
        import k_gateup
        kers.append(("gateup_kernel", k_gateup.gen_gateup(opts), (224, 768, k_gateup.LDS)))
    if "down" in which:
        import k_down
        kers.append(("down_kernel", k_down.gen_down(opts), (224, 256, k_down.LDS)))
    if "ffn" in which:
        import k_ffn
        kers.append(("ffn_kernel", k_ffn.gen_ffn(opts), (256, 256, k_ffn.LDS)))
    if "red" in which:
        import k_red
        kers.append(("red_kernel", k_red.gen_red(opts), (256, 448, 0)))
    head = ["; generated by gen/gen.py"]
    for n, _, (g, b, l) in kers:
        head.append(f"; @launch kernel={n} grid=({g},1,1) block=({b},1,1) lds={l}")
    for i in range(extra_empty):
        head.append(f"; @launch kernel=empty_kernel grid=(256,1,1) block=(256,1,1) lds=0")
    txt = "\n".join(head) + '\n.amdgcn_target "amdgcn-amd-amdhsa--gfx950"\n'
    descs = ""
    for n, (body, vg, ag), _ in kers:
        t, d = kernel_text(n, body, vg, ag)
        txt += t
        descs += d
    if extra_empty:
        t, d = kernel_text("empty_kernel", "    s_endpgm", 8, 0)
        txt += t
        descs += d
    open(out, "w").write(txt + descs)

if __name__ == "__main__":
    import asmgen
    if os.environ.get("PROF"):
        asmgen.PROF["on"] = True
    which = sys.argv[2].split(",") if len(sys.argv) > 2 else ("prep", "conv", "gateup", "down")
    opts = dict(kv.split("=") for kv in os.environ.get("OPTS", "").split(",") if kv)
    build(sys.argv[1] if len(sys.argv) > 1 else f"cdna_kernels/{NAME}.s", which, int(os.environ.get("EMPTY", "0")), opts)
```

```python
import re, os
WSBASE = int(os.environ.get("WSBASE", "0"), 0)

REG_RE = re.compile(r"\b([vas])(\d+)\b|\b([vas])\[(\d+):(\d+)\]|\b(vcc|exec|m0|vcc_lo|vcc_hi|exec_lo|exec_hi)\b")
TRANS = ("v_exp_f32", "v_log_f32", "v_rcp_f32", "v_rsq_f32", "v_sqrt_f32", "v_sin_f32", "v_cos_f32")
NO_DST_S = ("s_cmp", "s_waitcnt", "s_barrier", "s_branch", "s_cbranch", "s_nop", "s_endpgm", "s_setprio",
            "s_sleep", "s_bitcmp", "s_setreg", "s_sendmsg")


def regs_of(tok):
    out = set()
    for m in REG_RE.finditer(tok):
        if m.group(1):
            out.add((m.group(1), int(m.group(2))))
        elif m.group(3):
            for i in range(int(m.group(4)), int(m.group(5)) + 1):
                out.add((m.group(3), i))
        else:
            n = m.group(6)
            if n.startswith("vcc"):
                out.add(("s", "vcc"))
            elif n.startswith("exec"):
                out.add(("s", "exec"))
            else:
                out.add(("s", "m0"))
    return out


def split_ops(s):
    ops, depth, cur = [], 0, ""
    for ch in s:
        if ch == "[":
            depth += 1
        if ch == "]":
            depth -= 1
        if ch == "," and depth == 0:
            ops.append(cur.strip())
            cur = ""
        else:
            cur += ch
    if cur.strip():
        ops.append(cur.strip())
    return ops


class Ins:
    def __init__(self, text):
        self.text = text
        t = text.split(";")[0].strip()
        self.label = t.endswith(":")
        self.directive = t.startswith(".")
        parts = t.split(None, 1)
        self.op = parts[0] if parts else ""
        rest = parts[1] if len(parts) > 1 else ""
        ops = split_ops(rest)
        self.mods = ""
        if ops:
            last = ops[-1]
            m = re.match(r"^(\S+(?:\[[^\]]*\])?)\s*(.*)$", last)
            toks = last.split(None, 1)
            ops[-1] = toks[0]
            self.mods = toks[1] if len(toks) > 1 else ""
        self.ops = ops
        op = self.op
        self.mfma = op.startswith("v_mfma")
        self.valu = op.startswith("v_") and not self.mfma
        self.vmem = op.startswith(("buffer_", "global_", "flat_"))
        self.ds = op.startswith("ds_")
        self.salu = op.startswith("s_")
        self.trans = op.startswith(TRANS)
        self.dot = op.startswith("v_dot")
        self.dpp = self.valu and (op.endswith("_dpp") or re.search(r"quad_perm|row_|wave_", self.mods) is not None)
        self.permlane = op.startswith("v_permlane")
        self.readlane = op.startswith(("v_readfirstlane", "v_readlane"))
        self.ldsdma = self.vmem and (re.search(r"\blds\b", self.mods) is not None or "_lds_" in op)
        self.states = 1
        if op == "s_nop":
            self.states = int(ops[0], 0) + 1
        dst, src = set(), set()
        self.srcA = self.srcB = self.srcC = set()
        self.widedata = set()
        R = [regs_of(o) for o in ops]
        if self.mfma:
            dst = R[0]
            self.srcA, self.srcB, self.srcC = R[1], R[2], R[3]
            src = R[1] | R[2] | R[3]
            self.passes = 8 if "32x32x16" in op else 4
            assert "32x32x16_bf16" in op or "16x16x32_bf16" in op, op
        elif self.valu:
            if self.permlane or op.startswith("v_swap"):
                dst = R[0] | R[1]
                src = R[0] | R[1]
            elif op.startswith("v_cmpx"):
                dst = {("s", "exec")} | R[0]
                for r in R[1:]:
                    src |= r
            elif op.startswith("v_nop"):
                pass
            else:
                dst = R[0]
                start = 1
                if re.match(r"v_(add|sub|subrev|addc|subb)_co", op) or op.startswith("v_div_scale"):
                    dst = dst | R[1]
                    start = 2
                for r in R[start:]:
                    src |= r
                if op.startswith(("v_fmac", "v_dot2c", "v_mac", "v_pk_fmac")) or self.dpp or op.startswith("v_writelane"):
                    src |= R[0]
        elif self.vmem:
            if "store" in op or self.ldsdma or "atomic" in op or op.startswith(("buffer_wbl2", "buffer_inv")):
                for r in R:
                    src |= r
                if "store" in op and ("x3" in op or "x4" in op):
                    self.widedata = R[0] if op.startswith("buffer") else R[1]
                if "atomic" in op and "sc0" in self.mods:
                    dst = R[0]
                if self.ldsdma:
                    src.add(("s", "m0"))
            else:
                dst = R[0]
                for r in R[1:]:
                    src |= r
                if "d16" in op:
                    src |= R[0]
        elif self.ds:
            if op.startswith(("ds_write", "ds_add", "ds_max", "ds_min")) and "rtn" not in op:
                for r in R:
                    src |= r
            else:
                dst = R[0]
                for r in R[1:]:
                    src |= r
        elif self.salu:
            if op.startswith(NO_DST_S):
                for r in R:
                    src |= r
            else:
                if R:
                    dst = R[0]
                for r in R[1:]:
                    src |= r
                if "saveexec" in op:
                    dst = dst | {("s", "exec")}
        self.dst, self.src = dst, src
        self.vdst = {r for r in dst if r[0] in "va"}
        self.sdst = {r for r in dst if r[0] == "s"}
        self.vsrc = {r for r in src if r[0] in "va"}
        self.ssrc = {r for r in src if r[0] == "s"}


BIG = {4: 8, 8: 12}
OVL = {4: 6, 8: 10}
WARC = {4: 3, 8: 7}


def need(p, c):
    n = 0
    if p.valu and c.mfma and (p.vdst & c.vsrc):
        n = max(n, 2)
    if p.mfma:
        P = p.passes
        if c.mfma:
            if p.dst & (c.srcA | c.srcB):
                n = max(n, BIG[P])
            if p.dst & c.srcC:
                if p.dst == c.srcC and p.passes == c.passes:
                    pass
                else:
                    n = max(n, OVL[P])
            elif p.dst & c.dst:
                n = max(n, OVL[P])
        elif c.valu:
            if p.dst & (c.vsrc | c.vdst):
                n = max(n, BIG[P])
            if p.srcC & c.vdst:
                n = max(n, WARC[P])
        elif c.vmem or c.ds:
            if p.dst & (c.vsrc | c.vdst):
                n = max(n, BIG[P])
            if p.srcC & c.vdst:
                n = max(n, WARC[P])
    if p.valu and p.sdst:
        if c.vmem and (p.sdst & c.ssrc):
            n = max(n, 5)
        if c.valu and (p.sdst & c.ssrc):
            n = max(n, 4 if c.op.startswith(("v_readlane", "v_writelane", "v_div_fmas")) else 2)
        if ("s", "exec") in p.sdst:
            if c.dpp:
                n = max(n, 5)
            if c.mfma or c.readlane or c.permlane:
                n = max(n, 4)
    if p.valu and p.vdst:
        if (c.dpp or c.permlane) and (p.vdst & c.vsrc):
            n = max(n, 2)
        if c.readlane and (p.vdst & c.vsrc):
            n = max(n, 1)
    if p.trans and c.valu and not c.trans and (p.vdst & c.vsrc):
        n = max(n, 1)
    if p.trans and (c.vmem or c.ds) and (p.vdst & c.vsrc):
        n = max(n, 1)
    if p.salu and ("s", "m0") in p.sdst and c.ldsdma:
        n = max(n, 1)
    if p.widedata and (p.widedata & c.vdst):
        n = max(n, 2)
    if p.dot and (p.vdst & (c.vsrc | c.vdst)):
        if c.op == p.op:
            ab = set()
            for o in c.ops[1:3]:
                ab |= regs_of(o)
            if p.vdst & ab:
                n = max(n, 3)
        else:
            n = max(n, 3)
    return n


class Stream:
    def __init__(self):
        self.ins = []
        self.vm = 0
        self.lg = 0
        self.lg_done = 0
        self.vm_done = 0
        self.track = False

    def drain_lg(self):
        self("s_waitcnt lgkmcnt(0)")
        self.lg_done = self.lg

    def __call__(self, text):
        tok = None
        for line in text.split("\n"):
            line = line.strip()
            if not line or line.startswith(";"):
                continue
            i = Ins(line)
            self.ins.append(i)
            if WSBASE:
                if line == "s_load_dwordx2 s[12:13], s[0:1], 96":
                    self.wsp = True
                elif getattr(self, "wsp", False) and line == "s_waitcnt lgkmcnt(0)":
                    self.wsp = False
                    self.ins.append(Ins(f"s_add_u32 s12, s12, {WSBASE:#x}"))
                    self.ins.append(Ins("s_addc_u32 s13, s13, 0"))
            if i.vmem:
                self.vm += 1
                tok = ("vm", self.vm)
            if i.ds:
                self.lg += 1
                tok = ("lg", self.lg)
        return tok

    def wait(self, *toks, vm=None, lg=None):
        for t in toks:
            if t is None:
                continue
            if t[0] == "vm":
                if self.track and t[1] <= self.vm_done:
                    continue
                n = self.vm - t[1]
                vm = n if vm is None else min(vm, n)
            else:
                if t[1] <= self.lg_done:
                    continue
                n = self.lg - t[1]
                lg = n if lg is None else min(lg, n)
        parts = []
        if vm is not None:
            assert vm >= 0
            if vm <= 62:
                parts.append(f"vmcnt({vm})")
            else:
                parts.append("vmcnt(62)")
        if lg is not None:
            assert lg >= 0
            parts.append(f"lgkmcnt({min(lg, 14)})")
        if self.track:
            if vm is not None:
                self.vm_done = max(self.vm_done, self.vm - min(vm, 62))
            if lg is not None:
                self.lg_done = max(self.lg_done, self.lg - min(lg, 14))
        if parts:
            self("s_waitcnt " + " ".join(parts))
            return True
        return False

    def comment(self, s):
        i = Ins("; " + s)
        i.op = ""
        i.states = 0
        i.text = "; " + s
        self.ins.append(i)

    def finish(self):
        out = []
        hist = []
        nn = 0
        for c in self.ins:
            if c.op == "" or c.directive:
                out.append(c.text)
                continue
            if c.label:
                out.append(c.text)
                continue
            req = 0
            dist = 0
            for p in reversed(hist):
                r = need(p, c)
                if r - dist > req:
                    req = r - dist
                dist += p.states
                if dist > 24:
                    break
            while req > 0:
                k = min(req, 8)
                nop = Ins(f"s_nop {k - 1}")
                out.append("    " + nop.text)
                hist.append(nop)
                nn += 1
                req -= k
            out.append("    " + c.text)
            hist.append(c)
            if len(hist) > 40:
                hist = hist[-40:]
        self.nops = nn
        return "\n".join(out)


def kernel_text(name, body, vgpr, agpr=0, sgpr=102):
    acc = (vgpr + 3) // 4 * 4
    total = acc + agpr
    txt = f".text\n.globl {name}\n.p2align 8\n.type {name},@function\n{name}:\n{body}\n"
    desc = f""".section .rodata,"a"
.p2align 6
.amdhsa_kernel {name}
  .amdhsa_next_free_vgpr {total}
  .amdhsa_next_free_sgpr {sgpr}
  .amdhsa_accum_offset {acc}
  .amdhsa_group_segment_fixed_size 0
  .amdhsa_kernarg_size 104
  .amdhsa_user_sgpr_count 2
  .amdhsa_user_sgpr_kernarg_segment_ptr 1
  .amdhsa_system_sgpr_workgroup_id_x 1
.end_amdhsa_kernel
"""
    return txt, desc


PROF = {"on": False}
PROF_OFF = 0x3000000


def prof_begin(k):
    if not PROF["on"]:
        return
    k("s_memrealtime s[84:85]")
    k("s_load_dwordx2 s[72:73], s[0:1], 96")
    k("s_waitcnt lgkmcnt(0)")
    for i in range(1, 8):
        k(f"s_mov_b32 s{84+2*i}, 0")


def prof_stamp(k, i):
    if not PROF["on"]:
        return
    k(f"s_memrealtime s[{84+2*i}:{85+2*i}]")
    k("s_waitcnt lgkmcnt(0)")


def prof_clk(k, i):
    if not PROF["on"]:
        return
    k(f"s_memtime s[{84+2*i}:{85+2*i}]")
    k("s_waitcnt lgkmcnt(0)")


def prof_end(k, kidx, vtmp, drain=True):
    if not PROF["on"]:
        return
    if drain:
        k("s_waitcnt vmcnt(0)")
    k("s_memrealtime s[98:99]")
    k("s_mov_b64 exec, 1")
    k(f"s_add_u32 s76, s72, {PROF_OFF:#x}")
    k("s_addc_u32 s77, s73, 0")
    k("s_mov_b32 s78, 0x1000000")
    k("s_mov_b32 s79, 0x00020000")
    k(f"s_add_u32 s74, s2, {kidx*512}")
    k("s_lshl_b32 s74, s74, 9")
    k(f"v_lshrrev_b32 v{vtmp}, 6, v0")
    k(f"v_lshlrev_b32 v{vtmp}, 5, v{vtmp}")
    k("s_waitcnt lgkmcnt(0)")
    for i in range(8):
        k(f"v_mov_b32 v{vtmp+1}, s{84+2*i}")
        k(f"buffer_store_dword v{vtmp+1}, v{vtmp}, s[76:79], s74 offen offset:{4*i}")


def trace_dump(k, vtmp, n=14, base=56):
    if not PROF["on"]:
        return
    k("s_lshl_b32 s74, s2, 10")
    k("s_add_u32 s74, s74, 0x800000")
    k(f"v_lshlrev_b32 v{vtmp}, 1, v{vtmp}")
    for i in range(n):
        k(f"v_mov_b32 v{vtmp+1}, s{base+i}")
        k(f"buffer_store_dword v{vtmp+1}, v{vtmp}, s[76:79], s74 offen offset:{4*i}")
```
